```python
import torch

def _softmax(x, axis=-1):
    return torch.softmax(x, dim=axis)
def _gelu(x):
    return torch.nn.functional.gelu(x, approximate="tanh")
def _silu(x):
    return torch.nn.functional.silu(x)
def _sigmoid(x):
    return torch.sigmoid(x)
def _layernorm(x, axis=-1, eps=1e-5):
    m = x.mean(dim=axis, keepdim=True)
    v = x.var(dim=axis, keepdim=True, unbiased=False)
    return (x - m) / torch.sqrt(v + eps)
def _scatter_add(tgt, idx, src, axis=0):
    return tgt.clone().index_add_(axis, idx, src)
def _segment_sum(src, seg, n):
    out = torch.zeros((n,) + src.shape[1:], dtype=src.dtype)
    return out.index_add_(0, seg, src)
def _pad(x, pw):
    flat = tuple(v for pair in reversed(pw) for v in pair)
    return torch.nn.functional.pad(x, flat)

kernel_name = 'parallel_sum__compressed_kv_cla__dense_activation_squared_relu__decode'

def setup_inputs():

    _w = (lambda a: (lambda t: t.to(torch.bfloat16) if t.is_floating_point() else t)(torch.as_tensor(a)))
    def _A_setup():
        B, H, Sq, Sk, D, M = 4, 32, 1, 4096, 128, 512
        Dc = 4 * D
        return {
            "x": _w((lambda *s: torch.randn(*s, dtype=torch.bfloat16) * 0.05)(B, Sq, M)),
            "c_kv": _w((lambda *s: torch.randn(*s, dtype=torch.bfloat16) * 3.2)(B, Sk, Dc)),
            "w_q": _w((lambda *s: torch.randn(*s, dtype=torch.bfloat16) * 1.6)(M, H, D) * (M ** -0.5)),
            "w_uk": _w((lambda *s: torch.randn(*s, dtype=torch.bfloat16) * 1.6)(Dc, H, D) * (Dc ** -0.5)),
            "w_uv": _w((lambda *s: torch.randn(*s, dtype=torch.bfloat16) * 3.2)(Dc, H, D) * (Dc ** -0.5)),
            "w_o": _w((lambda *s: torch.randn(*s, dtype=torch.bfloat16) * 3.2)(H, D, M) * ((H * D) ** -0.5)),
        }
    _A_in = _A_setup()

    def _B_setup():
        B, S, D, F = 4, 1, 512, 1792
        return {
            "x": _w((lambda *s: torch.randn(*s, dtype=torch.bfloat16) * 0.05)(B, S, D)),
            "w1": _w((lambda *s: torch.randn(*s, dtype=torch.bfloat16) * 0.1)(D, F)),
            "b1": _w((lambda *s: torch.randn(*s, dtype=torch.bfloat16) * 0.8)(F)),
            "w2": _w((lambda *s: torch.randn(*s, dtype=torch.bfloat16) * 0.1)(F, D)),
            "b2": _w((lambda *s: torch.randn(*s, dtype=torch.bfloat16) * 12.8)(D)),
        }
    _B_in = _B_setup()

    return {
        "A_x": _A_in["x"],
        "A_c_kv": _A_in["c_kv"],
        "A_w_q": _A_in["w_q"],
        "A_w_uk": _A_in["w_uk"],
        "A_w_uv": _A_in["w_uv"],
        "A_w_o": _A_in["w_o"],
        "B_x": _B_in["x"],
        "B_w1": _B_in["w1"],
        "B_b1": _B_in["b1"],
        "B_w2": _B_in["w2"],
        "B_b2": _B_in["b2"],
    }

def reference(A_x, A_c_kv, A_w_q, A_w_uk, A_w_uv, A_w_o, B_x, B_w1, B_b1, B_w2, B_b2):
    def _A_ref(x, c_kv, w_q, w_uk, w_uv, w_o):
        B, Sq, M = x.shape[0], x.shape[1], x.shape[2]
        Sk = c_kv.shape[1]
        H, D = w_q.shape[1], w_q.shape[2]
        q = torch.einsum("bqm,mhd->bhqd", x, w_q)
        k = torch.einsum("bkc,chd->bhkd", c_kv, w_uk)
        v = torch.einsum("bkc,chd->bhkd", c_kv, w_uv)
        scores = torch.einsum("bhqd,bhkd->bhqk", q, k) * (D ** -0.5)
        off = Sk - Sq
        qi = torch.arange(Sq)[:, None]
        kj = torch.arange(Sk)[None, :]
        cmask = kj <= (qi + off)
        scores = torch.where(cmask[None, None], scores, -1e9)
        p = _softmax(scores, axis=-1)
        ctx = torch.einsum("bhqk,bhkd->bhqd", p, v)
        return torch.einsum("bhqd,hdm->bqm", ctx, w_o)

    def _B_ref(x, w1, b1, w2, b2):
        h = torch.einsum("bsd,df->bsf", x, w1) + b1
        zero = torch.zeros_like(h)
        r = torch.where(h > zero, h, zero)
        h = r * r
        out = torch.einsum("bsf,fd->bsd", h, w2) + b2
        return out

    x = A_x
    xn = _layernorm(x, axis=-1)
    return x + _A_ref(xn, A_c_kv, A_w_q, A_w_uk, A_w_uv, A_w_o) + _B_ref(xn, B_w1, B_b1, B_w2, B_b2)
```

```python
import sys, struct

NAME = "parallel_sum__compressed_kv_cla__dense_activation_squared_relu__decode"

def f32bits(x):
    return struct.unpack("<I", struct.pack("<f", x))[0]

class Opt:
    stamps = False
    spin_limit = 1 << 16
    d2 = 20
    d3 = 10
    d5 = 25
    nt = 1
    wo_pre = 8
    d3 = 30

H2_BASE = 0
H3_BASE = 0x100000
CS3 = 32768
HS3 = 8 * CS3
ST_BASE = 0x900000
H5_BASE = 0xA00000
PS5 = 8192 + 128
STAMP_BASE = 0x1000000
ROW = 1056
QC = 0
RED = 0
TR3 = 0
TRW = 2304
W2L = 0
W1L = 8448
RED2 = 16640
FIN = 17664 - 1024
XNB = 18432
PBUF = 22528
QBF = 22528
CTXC = 22528
CTX = 23040
SCL = 24064
MX = 26624
LS = 27136
HBUF = 27648
NONCE = 27904
CNT = 27920
TILE = 28672
LDS_BYTES = TILE + 128 * ROW
assert LDS_BYTES == 163840

X, CKV, WQ, WUK, WUV, WO, W1, B1, W2, B2, OUT, DBG, WS = [4 + 4 * i for i in range(13)]
sWAVE, sH, sJ, sBQ, sCHUNK, sHG, sQ, sF0 = range(56, 64)
sT = [64, 65, 66, 67]
sMASK, sPLO, sPHI, sCS = 68, 69, 70, 71
sA, sB, sC, sD, sE, sF = 72, 73, 74, 75, 76, 77
sDS, sDM = 78, 79
sSEL = 80
sSPIN = 82
sU = 83
sSTAMP0 = 84
sG = 100
vL, vR, vG = 0, 1, 2
vL16, vZ = 8, 9
vT = [12, 13, 14, 15]
ACC = 16
QKA = 32
WOR = 96
PV1 = 160
vM = 224

def srd(b): return f"s[{b}:{b+3}]"
def vq(b, n=4): return f"v[{b}:{b+n-1}]"

class Gen:
    def __init__(self, opt):
        self.o = opt
        self.L = []
        self.nlabel = 0
        self.vm = []
        self.nt = " nt" if opt.nt else ""
    def e(self, s): self.L.append("    " + s)
    def lab(self, s): self.L.append(s + ":")
    def c(self, s): self.L.append("    ; " + s)
    def newlabel(self, p="L"):
        self.nlabel += 1
        return f"{p}_{self.nlabel}"
    def vmem(self, s, tag):
        self.e(s); self.vm.append(tag)
    def wait_vm(self, tag, extra=""):
        idx = max(i for i, t in enumerate(self.vm) if t == tag)
        n = len(self.vm) - 1 - idx
        assert n <= 63, (tag, n)
        self.e(f"s_waitcnt vmcnt({n}){extra}")
    def stamp(self, idx):
        if not self.o.stamps: return
        self.e(f"s_memrealtime s[{sE}:{sF}]")
        self.e("s_waitcnt lgkmcnt(0)")
        self.e(f"s_mov_b32 s{sSTAMP0+idx}, s{sE}")
    def nop(self, n):
        while n > 0:
            k = min(n, 16)
            self.e(f"s_nop {k-1}")
            n -= k
    def allreduce_mod4(self, v, tmp, op="v_add_f32"):
        e = self.e
        self.nop(2)
        e(f"{op} v{v}, v{v}, v{v} row_ror:4")
        self.nop(2)
        e(f"{op} v{v}, v{v}, v{v} row_ror:8")
        self.cross_rows(v, tmp, op)
    def cross_rows(self, v, tmp, op, do32=True):
        e = self.e
        e(f"v_mov_b32 v{tmp}, v{v}")
        self.nop(2)
        e(f"v_permlane16_swap_b32 v{v}, v{tmp}")
        e(f"{op} v{v}, v{v}, v{tmp}")
        if do32:
            e(f"v_mov_b32 v{tmp}, v{v}")
            self.nop(2)
            e(f"v_permlane32_swap_b32 v{v}, v{tmp}")
            e(f"{op} v{v}, v{v}, v{tmp}")
    def cnt_signal(self, k, vtmp):
        e = self.e
        e(f"v_mov_b32 v{vtmp}, 1")
        e("s_mov_b64 exec, 1")
        e(f"ds_add_u32 v{vZ}, v{vtmp} offset:{CNT+4*k}")
        e("s_mov_b64 exec, -1")
    def cnt_wait(self, k, target, vtmp):
        e = self.e
        Lp = self.newlabel("L_cw"); Lo = self.newlabel("L_cwok")
        self.lab(Lp)
        e(f"ds_read_b32 v{vtmp}, v{vZ} offset:{CNT+4*k}")
        e(f"s_add_u32 s{sSPIN}, s{sSPIN}, 1")
        e(f"s_cmp_gt_u32 s{sSPIN}, 0x60000000")
        e(f"s_cbranch_scc1 {Lo}")
        e("s_waitcnt lgkmcnt(0)")
        e(f"v_readfirstlane_b32 s{sG}, v{vtmp}")
        e(f"s_cmp_ge_u32 s{sG}, {target}")
        e(f"s_cbranch_scc0 {Lp}")
        self.lab(Lo)
        e("s_waitcnt lgkmcnt(0)")
    def check_quad(self, q, vacc):
        e = self.e
        for k in range(4):
            e(f"v_xor_b32 v{q+k}, s{sT[k]}, v{q+k}")
        e(f"v_or3_b32 v{vacc}, v{q}, v{q+1}, v{q+2}")
        e(f"v_or_b32 v{vacc}, v{vacc}, v{q+3}")
        e(f"v_and_b32 v{vacc}, 0xfff, v{vacc}")
        e(f"v_cmp_ne_u32 vcc, 0, v{vacc}")
    def gather(self, loads, regs, vacc, tag):
        e, lab = self.e, self.lab
        n = len(loads)
        sP = sG + 1
        Ltop = self.newlabel("L_g"); Ldone = self.newlabel("L_gdone")
        e(f"s_mov_b32 s{sP}, {(1 << n) - 1}")
        self.wait_vm(tag)
        lab(Ltop)
        for k in range(n):
            Ls = self.newlabel("L_gs")
            e(f"s_bitcmp1_b32 s{sP}, {k}")
            e(f"s_cbranch_scc0 {Ls}")
            self.check_quad(regs[k], vacc)
            e(f"s_bitset0_b32 s{sP}, {k}")
            e(f"s_cbranch_vccz {Ls}")
            e(f"s_bitset1_b32 s{sP}, {k}")
            for l in loads[k]: e(l)
            lab(Ls)
        e(f"s_cmp_eq_u32 s{sP}, 0")
        e(f"s_cbranch_scc1 {Ldone}")
        e(f"s_add_u32 s{sSPIN}, s{sSPIN}, 0x10000")
        e(f"s_cmp_gt_u32 s{sSPIN}, 0x40000000")
        e(f"s_cbranch_scc1 {Ldone}")
        e("s_waitcnt vmcnt(0)")
        e(f"s_branch {Ltop}")
        lab(Ldone)
    def issue(self, loads, tag):
        for l in loads:
            for x in l[:-1]: self.e(x)
            self.vmem(l[-1], tag)

    def build(self):
        o = self.o
        e, c, lab = self.e, self.c, self.lab
        e("s_cmp_ge_u32 s2, 256")
        e("s_cbranch_scc1 L_end")
        offs = {X: 0, CKV: 8, WQ: 16, WUK: 24, WUV: 32, WO: 40, W1: 56, B1: 64, W2: 72, B2: 80, OUT: 88, DBG: 96, WS: 104}
        sizes = {X: 4096, CKV: 16 << 20, WQ: 4 << 20, WUK: 4 << 20, WUV: 4 << 20, WO: 4 << 20,
                 W1: 512 * 1792 * 2, B1: 1792 * 2, W2: 1792 * 512 * 2, B2: 1024, OUT: 4096, DBG: 256, WS: 1 << 28}
        for b in (X, DBG, WQ, WUK, CKV, WS, WO, W1, W2, B1, WUV, B2, OUT):
            e(f"s_load_dwordx2 s[{b}:{b+1}], s[0:1], {offs[b]}")
        for b in offs:
            e(f"s_mov_b32 s{b+2}, 0x{sizes[b]:x}")
            e(f"s_mov_b32 s{b+3}, 0x00020000")
        e("v_lshrrev_b32 v3, 6, v0")
        e("v_and_b32 v0, 63, v0")
        e(f"v_readfirstlane_b32 s{sWAVE}, v3")
        e(f"v_and_b32 v{vR}, 15, v0")
        e(f"v_lshrrev_b32 v{vG}, 4, v0")
        e(f"s_and_b32 s{sA}, s2, 7")
        e(f"s_lshr_b32 s{sB}, s2, 3")
        e(f"s_lshr_b32 s{sC}, s{sB}, 3")
        e(f"s_lshl_b32 s{sH}, s{sA}, 2")
        e(f"s_add_u32 s{sH}, s{sH}, s{sC}")
        e(f"s_and_b32 s{sJ}, s{sB}, 7")
        e(f"s_lshr_b32 s{sC}, s{sB}, 1")
        e(f"s_lshl_b32 s{sQ}, s{sA}, 4")
        e(f"s_add_u32 s{sQ}, s{sQ}, s{sC}")
        e(f"s_and_b32 s{sHG}, s{sB}, 1")
        e(f"s_lshr_b32 s{sBQ}, s{sQ}, 5")
        e(f"s_and_b32 s{sCHUNK}, s{sQ}, 31")
        e(f"s_lshl_b32 s{sF0}, s2, 3")
        e(f"s_mov_b32 s{sMASK}, 0xfffff000")
        e(f"s_mov_b32 s{sPLO}, 0x05040100")
        e(f"s_mov_b32 s{sPHI}, 0x07060302")
        e(f"s_mov_b32 s{sCS}, 0x{f32bits(128 ** -0.5 * 1.4426950408889634):08x}")
        e(f"s_mov_b32 s{sSPIN}, 0")
        e(f"s_and_b32 s{sU}, s{sWAVE}, 3")
        e(f"v_lshlrev_b32 v{vL16}, 4, v0")
        e(f"v_mov_b32 v{vZ}, 0")
        if o.stamps:
            for k in range(16): e(f"s_mov_b32 s{sSTAMP0+k}, 0")
        e(f"s_cmp_ge_u32 s{sWAVE}, 4")
        e("s_cbranch_scc1 L_loader")
        self.vm = []
        self.light()
        e("s_branch L_end")
        lab("L_loader")
        self.vm = []
        self.loader()
        lab("L_end")
        e("s_endpgm")

    def layernorm_row(self, XR, U):
        e = self.e
        def allreduce64(v, tmp):
            for rr in (1, 2, 4, 8):
                self.nop(2)
                e(f"v_add_f32 v{v}, v{v}, v{v} row_ror:{rr}")
            self.cross_rows(v, tmp, "v_add_f32")
        for k in range(4):
            e(f"v_lshlrev_b32 v{U+2*k}, 16, v{XR+k}")
            e(f"v_and_b32 v{U+2*k+1}, 0xffff0000, v{XR+k}")
        e(f"v_pk_add_f32 v[4:5], {vq(U,2)}, {vq(U+2,2)}")
        e(f"v_pk_add_f32 v[6:7], {vq(U+4,2)}, {vq(U+6,2)}")
        e("v_pk_add_f32 v[4:5], v[4:5], v[6:7]")
        e("v_add_f32 v4, v4, v5")
        allreduce64(4, 5)
        e(f"v_mul_f32 v4, 0x{f32bits(1/512):08x}, v4")
        for k in range(8):
            e(f"v_sub_f32 v{U+8+k}, v{U+k}, v4")
        e(f"v_mul_f32 v6, v{U+8}, v{U+8}")
        e(f"v_mul_f32 v7, v{U+9}, v{U+9}")
        for k in range(1, 4):
            e(f"v_fmac_f32 v6, v{U+8+2*k}, v{U+8+2*k}")
            e(f"v_fmac_f32 v7, v{U+9+2*k}, v{U+9+2*k}")
        e("v_add_f32 v6, v6, v7")
        allreduce64(6, 5)
        e(f"v_mul_f32 v6, 0x{f32bits(1/512):08x}, v6")
        e("v_cvt_pk_bf16_f32 v4, v4, v6")
        e("v_and_b32 v6, 0xffff0000, v4")
        e("v_lshlrev_b32 v4, 16, v4")
        e(f"v_add_f32 v6, 0x{f32bits(1e-5):08x}, v6")
        e("v_cvt_pk_bf16_f32 v6, v6, v6")
        e("v_lshlrev_b32 v6, 16, v6")
        e("v_sqrt_f32 v6, v6")
        for k in range(8):
            e(f"v_sub_f32 v{U+k}, v{U+k}, v4")
        e("v_cvt_pk_bf16_f32 v6, v6, v6")
        e("v_lshlrev_b32 v6, 16, v6")
        e("v_rcp_f32 v6, v6")
        for k in range(4):
            e(f"v_cvt_pk_bf16_f32 v{XR+k}, v{U+2*k}, v{U+2*k+1}")
        for k in range(4):
            e(f"v_lshlrev_b32 v{U+2*k}, 16, v{XR+k}")
            e(f"v_and_b32 v{U+2*k+1}, 0xffff0000, v{XR+k}")
        for k in range(8):
            e(f"v_mul_f32 v{U+k}, v{U+k}, v6")
        for k in range(4):
            e(f"v_cvt_pk_bf16_f32 v{XR+k}, v{U+2*k}, v{U+2*k+1}")

    def xn_addr(self, v):
        e = self.e
        e(f"v_and_b32 v{v}, 3, v{vR}")
        e(f"v_lshlrev_b32 v{v}, 10, v{v}")
        e(f"v_lshl_add_u32 v{v}, v{vG}, 4, v{v}")
        e(f"s_lshl_b32 s{sA}, s{sU}, 8")
        e(f"v_add_u32 v{v}, s{sA}, v{v}")

    def light(self):
        o = self.o
        e, c, lab = self.e, self.c, self.lab
        nt = self.nt
        XN = ACC
        WQR = WOR
        WQT = PV1
        QACC = PV1 + 16
        WUKF = vM
        vNON = 10
        e(f"v_lshlrev_b32 v5, 16, v{vG}")
        e(f"v_lshl_add_u32 v5, v{vR}, 3, v5")
        e(f"v_lshlrev_b32 v6, 13, v{vR}")
        e(f"v_lshl_add_u32 v6, v{vG}, 4, v6")
        e("s_waitcnt lgkmcnt(0)")
        self.stamp(0)
        Lskip = self.newlabel("L_nonce")
        e("s_cmp_lg_u32 s2, 0")
        e(f"s_cbranch_scc1 {Lskip}")
        e(f"s_cmp_lg_u32 s{sWAVE}, 3")
        e(f"s_cbranch_scc1 {Lskip}")
        e(f"s_memrealtime s[{sE}:{sF}]")
        e("s_waitcnt lgkmcnt(0)")
        e(f"s_or_b32 s{sF}, s{sF}, 0x80000000")
        e(f"v_mov_b32 v10, s{sE}")
        e(f"v_mov_b32 v11, s{sF}")
        e("s_mov_b64 exec, 1")
        e(f"buffer_store_dwordx2 v[10:11], v{vZ}, {srd(DBG)}, 0 offen sc1")
        e("s_mov_b64 exec, -1")
        lab(Lskip)
        e(f"s_lshl_b32 s{sB}, s{sH}, 8")
        e(f"s_and_b32 s{sC}, s{sJ}, 1")
        e(f"s_lshl_b32 s{sC}, s{sC}, 7")
        e(f"s_add_u32 s{sB}, s{sB}, s{sC}")
        e(f"s_lshl_b32 s{sA}, s{sWAVE}, 20")
        e(f"s_add_u32 s{sA}, s{sA}, s{sB}")
        for s in range(4):
            for jj in range(8):
                self.vmem(f"buffer_load_dwordx2 {vq(WQR+(s*8+jj)*2,2)}, v5, {srd(WQ)}, s{sA} offen{nt}", f"wq{s}")
                if not (s == 3 and jj == 7):
                    e(f"s_add_u32 s{sA}, s{sA}, {8192 if jj < 7 else 8192*25}")
            if s == 0: e("s_barrier")
        c("w_uk rows c = 128cq + 32v + 16 tile + r")
        e(f"s_lshr_b32 s{sA}, s{sJ}, 1")
        e(f"s_lshl_b32 s{sA}, s{sA}, 20")
        e(f"s_lshl_b32 s{sC}, s{sWAVE}, 18")
        e(f"s_add_u32 s{sA}, s{sA}, s{sC}")
        e(f"s_add_u32 s{sA}, s{sA}, s{sB}")
        e(f"s_add_u32 s{sC}, s{sA}, {16*8192}")
        for tl in range(2):
            for s in range(2):
                self.vmem(f"buffer_load_dwordx4 {vq(WUKF+(tl*2+s)*4)}, v6, {srd(WUK)}, s{sA if tl == 0 else sC} offen offset:{64*s}", "wuk")
        self.vmem(f"buffer_load_dwordx2 {vq(vNON,2)}, v{vZ}, {srd(DBG)}, 0 offen sc1", "nonce")
        self.stamp(1)
        self.xn_addr(4)
        self.cnt_wait(4, 4, 3)
        for s in range(4):
            e(f"ds_read_b128 {vq(XN+4*s)}, v4 offset:{XNB+64*s}")
        c("RED write addr v5 = v*1024 + r*64")
        e(f"s_lshl_b32 s{sA}, s{sWAVE}, 10")
        e(f"v_lshlrev_b32 v5, 6, v{vR}")
        e(f"v_add_u32 v5, s{sA}, v5")
        self.stamp(2)
        for s in range(4):
            self.wait_vm(f"wq{s}", " lgkmcnt(0)" if s == 0 else "")
            for i in range(4):
                for t in range(4):
                    lo = WQR + (s * 8 + 2 * t) * 2 + (i >> 1)
                    hi = WQR + (s * 8 + 2 * t + 1) * 2 + (i >> 1)
                    e(f"v_perm_b32 v{WQT+i*4+t}, v{hi}, v{lo}, s{sPHI if i & 1 else sPLO}")
            self.nop(1)
            for i in range(4):
                cc = "0" if s == 0 else vq(QACC + 4 * i)
                e(f"v_mfma_f32_16x16x32_bf16 {vq(QACC+4*i)}, {vq(XN+4*s)}, {vq(WQT+i*4)}, {cc}")
        self.stamp(3)
        e("s_mov_b64 exec, 0xffff")
        self.nop(5)
        for i in range(4):
            e(f"ds_write_b128 v5, {vq(QACC+4*i)} offset:{RED+16*i}")
        e("s_mov_b64 exec, -1")
        self.cnt_signal(0, 3)
        c("stage1: t = 64v+lane: d=t>>2, b=t&3 ; read RED + t*4 + k*1024 ; write QBF + b*128 + d*2")
        e(f"s_lshl_b32 s{sA}, s{sWAVE}, 8")
        e("v_lshlrev_b32 v6, 2, v0")
        e(f"v_add_u32 v6, s{sA}, v6")
        e("v_and_b32 v5, 3, v0")
        e("v_lshlrev_b32 v5, 7, v5")
        e("v_lshrrev_b32 v4, 2, v0")
        e("v_lshl_add_u32 v5, v4, 1, v5")
        e(f"s_lshl_b32 s{sA}, s{sWAVE}, 5")
        e(f"v_add_u32 v5, s{sA}, v5")
        self.cnt_wait(0, 4, 3)
        for k in range(4):
            e(f"ds_read_b32 v{WQT+k}, v6 offset:{RED+1024*k}")
        e("s_waitcnt lgkmcnt(0)")
        e(f"v_add_f32 v{WQT}, v{WQT}, v{WQT+1}")
        e(f"v_add_f32 v{WQT+2}, v{WQT+2}, v{WQT+3}")
        e(f"v_add_f32 v{WQT}, v{WQT}, v{WQT+2}")
        e(f"v_cvt_pk_bf16_f32 v{WQT}, v{WQT}, v{WQT}")
        e(f"ds_write_b16 v5, v{WQT} offset:{QBF}")
        Ln = self.newlabel("L_noncedone"); Lp = self.newlabel("L_noncepoll"); Lok = self.newlabel("L_nonceok")
        e(f"s_cmp_lg_u32 s{sWAVE}, 3")
        e(f"s_cbranch_scc1 {Ln}")
        e("s_waitcnt vmcnt(0)")
        lab(Lp)
        e(f"v_readfirstlane_b32 s{sA}, v{vNON+1}")
        e(f"s_add_u32 s{sSPIN}, s{sSPIN}, 1")
        e(f"s_cmp_gt_u32 s{sSPIN}, 0x60000000")
        e(f"s_cbranch_scc1 {Lok}")
        e(f"s_bitcmp1_b32 s{sA}, 31")
        e(f"s_cbranch_scc1 {Lok}")
        e(f"buffer_load_dwordx2 {vq(vNON,2)}, v{vZ}, {srd(DBG)}, 0 offen sc1")
        e("s_waitcnt vmcnt(0)")
        e(f"s_branch {Lp}")
        lab(Lok)
        e(f"ds_write_b64 v{vZ}, {vq(vNON,2)} offset:{NONCE}")
        lab(Ln)
        self.cnt_signal(1, 3)
        c("q frag addr v4 = (r&3)*128 + 16g ; publish voff v5 = (r&3)*65536 + ((r>>2)&1)*64 + 16g")
        e(f"v_and_b32 v6, 3, v{vR}")
        e("v_lshlrev_b32 v4, 7, v6")
        e(f"v_lshl_add_u32 v4, v{vG}, 4, v4")
        e("v_lshlrev_b32 v5, 16, v6")
        e(f"v_lshl_add_u32 v5, v{vG}, 4, v5")
        e(f"v_bfe_u32 v6, v{vR}, 2, 1")
        e("v_lshl_add_u32 v5, v6, 6, v5")
        c("soff = dhalf*262144 + h*2048 + cq*512 + v*128")
        e(f"s_and_b32 s{sA}, s{sJ}, 1")
        e(f"s_lshl_b32 s{sA}, s{sA}, 18")
        e(f"s_lshl_b32 s{sB}, s{sH}, 11")
        e(f"s_add_u32 s{sA}, s{sA}, s{sB}")
        e(f"s_lshr_b32 s{sB}, s{sJ}, 1")
        e(f"s_lshl_b32 s{sB}, s{sB}, 9")
        e(f"s_add_u32 s{sA}, s{sA}, s{sB}")
        e(f"s_lshl_b32 s{sB}, s{sWAVE}, 7")
        e(f"s_add_u32 s{sA}, s{sA}, s{sB}")
        e(f"s_mov_b32 s{sSEL}, 0x00f000f0")
        e(f"s_mov_b32 s{sSEL+1}, 0x00f000f0")
        self.cnt_wait(1, 4, 3)
        QF = WQT
        e(f"ds_read_b64 v[10:11], v{vZ} offset:{NONCE}")
        for s in range(2):
            e(f"ds_read_b128 {vq(QF+4*s)}, v4 offset:{QBF+64*s}")
        self.wait_vm("nonce", " lgkmcnt(0)")
        for s in range(2):
            for tl in range(2):
                cc = "0" if s == 0 else vq(QACC + 4 * tl)
                e(f"v_mfma_f32_16x16x32_bf16 {vq(QACC+4*tl)}, {vq(WUKF+(tl*2+s)*4)}, {vq(QF+4*s)}, {cc}")
        self.decode_tags()
        for k in range(4):
            e(f"v_cndmask_b32 v{QACC+k}, v{QACC+k}, v{QACC+4+k}, s[{sSEL}:{sSEL+1}]")
        for k in range(4):
            e(f"v_bfi_b32 v{QACC+k}, s{sMASK}, v{QACC+k}, v{vT[k]}")
        e("s_mov_b32 exec_lo, 0x00ff00ff")
        e("s_mov_b32 exec_hi, 0x00ff00ff")
        self.vmem(f"buffer_store_dwordx4 {vq(QACC)}, v5, {srd(WS)}, s{sA} offen sc1", "pub2")
        e("s_mov_b64 exec, -1")
        self.stamp(4)
        c("H2 base sD = bq*65536 + (16hg+4v)*2048 ; second part +262144 -> sC ; +4096 variants")
        e(f"s_lshl_b32 s{sD}, s{sBQ}, 16")
        e(f"s_lshl_b32 s{sA}, s{sHG}, 15")
        e(f"s_add_u32 s{sD}, s{sD}, s{sA}")
        e(f"s_lshl_b32 s{sA}, s{sWAVE}, 13")
        e(f"s_add_u32 s{sD}, s{sD}, s{sA}")
        e(f"s_add_u32 s{sC}, s{sD}, 262144")
        e(f"s_add_u32 s{sDS}, s{sD}, 4096")
        e(f"s_add_u32 s{sDM}, s{sC}, 4096")
        self.p2_addrs()
        if o.d2: e(f"s_sleep {o.d2}")
        H2R = WOR
        h2loads = []
        for k8 in range(8):
            for p in range(2):
                base = [[sD, sDS], [sC, sDM]][p][k8 >> 2]
                h2loads.append([f"buffer_load_dwordx4 {vq(H2R+(k8*2+p)*4)}, v{vL16}, {srd(WS)}, s{base} offen offset:{1024*(k8&3)} sc1"])
        self.issue(h2loads, "h2")
        self.stamp(5)
        e("s_barrier")
        self.prereads()
        self.stamp(6)
        self.gather(h2loads, [H2R + 4 * k for k in range(16)], 3, "h2")
        self.stamp(7)
        c("QC write addr v4 = 4v*ROW + lane*8 ; imm hh*ROW + q*512")
        e(f"s_mul_i32 s{sA}, s{sWAVE}, {4*ROW}")
        e("v_lshlrev_b32 v4, 3, v0")
        e(f"v_add_u32 v4, s{sA}, v4")
        for k8 in range(8):
            a = H2R + k8 * 8; b = a + 4
            e(f"v_pk_add_f32 {vq(a,2)}, {vq(a,2)}, {vq(b,2)}")
            e(f"v_pk_add_f32 {vq(a+2,2)}, {vq(a+2,2)}, {vq(b+2,2)}")
            e(f"v_cvt_pk_bf16_f32 v{a}, v{a}, v{a+1}")
            e(f"v_cvt_pk_bf16_f32 v{a+1}, v{a+2}, v{a+3}")
            e(f"ds_write_b64 v4, {vq(a,2)} offset:{QC+(k8>>1)*ROW+(k8&1)*512}")
        self.cnt_signal(2, 3)
        self.cnt_wait(2, 4, 3)
        self.p2(loader=False)
        c("=========== after publish ===========")
        e("s_barrier")
        self.bulk2()
        c("H3 addrs: sD = H3 + (h*8+j)*CS3 + v*8192 (+4096 -> sDS) ; stats v10 = (l&31)*16, sC = ST + (h*4+v)*512")
        e(f"s_lshl_b32 s{sD}, s{sH}, 3")
        e(f"s_add_u32 s{sD}, s{sD}, s{sJ}")
        e(f"s_mul_i32 s{sD}, s{sD}, {CS3}")
        e(f"s_lshl_b32 s{sA}, s{sWAVE}, 13")
        e(f"s_add_u32 s{sD}, s{sD}, s{sA}")
        e(f"s_add_u32 s{sD}, s{sD}, {H3_BASE}")
        e(f"s_add_u32 s{sDS}, s{sD}, 4096")
        e("v_and_b32 v10, 31, v0")
        e("v_lshlrev_b32 v10, 4, v10")
        e(f"s_lshl_b32 s{sC}, s{sH}, 2")
        e(f"s_add_u32 s{sC}, s{sC}, s{sWAVE}")
        e(f"s_lshl_b32 s{sC}, s{sC}, 9")
        e(f"s_add_u32 s{sC}, s{sC}, {ST_BASE}")
        self.tr_addr()
        if o.d3: e(f"s_sleep {o.d3}")
        D3 = PV1 + 16; ST3 = PV1 + 48; SC = PV1 + 52; A0 = PV1 + 60
        h3loads = [[f"buffer_load_dwordx4 {vq(D3+4*t)}, v{vL16}, {srd(WS)}, s{sD if t < 4 else sDS} offen offset:{1024*(t&3)} sc1"] for t in range(8)]
        h3loads.append([f"buffer_load_dwordx4 {vq(ST3)}, v10, {srd(WS)}, s{sC} offen sc1"])
        self.issue(h3loads, "h3")
        self.stamp(10)
        self.wait_vm("bulk")
        self.stamp(11)
        e("s_barrier")
        self.wo_tr()
        self.gather(h3loads, [D3 + 4 * t for t in range(8)] + [ST3], 3, "h3")
        self.stamp(12)
        e(f"v_lshrrev_b32 v{ST3+2}, 20, v{ST3+2}")
        e(f"v_lshrrev_b32 v{ST3+3}, 20, v{ST3+3}")
        e(f"v_or_b32 v{ST3}, v{ST3}, v{ST3+2}")
        e(f"v_or_b32 v{ST3+1}, v{ST3+1}, v{ST3+3}")
        e(f"v_mov_b32 v5, v{ST3}")
        for rr in (1, 2, 4, 8):
            self.nop(2)
            e(f"v_max_f32 v5, v5, v5 row_ror:{rr}")
        self.cross_rows(5, 6, "v_max_f32", do32=False)
        e(f"v_sub_f32 v{ST3}, v{ST3}, v5")
        e(f"v_exp_f32 v{ST3}, v{ST3}")
        c("SCL write v6 = v*128 + (c&3)*32 + (c>>2)*4, c = l&31 ; read v7 = v*128 + g*32")
        e("v_and_b32 v6, 3, v0")
        e(f"v_mul_f32 v5, v{ST3}, v{ST3+1}")
        e("v_lshlrev_b32 v6, 5, v6")
        e("v_bfe_u32 v7, v0, 2, 3")
        e("v_add_f32 v5, v5, v5 row_ror:1")
        e("v_lshl_add_u32 v6, v7, 2, v6")
        e(f"s_lshl_b32 s{sA}, s{sWAVE}, 7")
        e("v_add_f32 v5, v5, v5 row_ror:2")
        e(f"v_add_u32 v6, s{sA}, v6")
        e(f"v_lshlrev_b32 v7, 5, v{vG}")
        e("v_add_f32 v5, v5, v5 row_ror:4")
        e(f"v_add_u32 v7, s{sA}, v7")
        self.nop(1)
        e("v_add_f32 v5, v5, v5 row_ror:8")
        self.cross_rows(5, 4, "v_add_f32", do32=False)
        e("v_rcp_f32 v5, v5")
        self.nop(1)
        e(f"v_mul_f32 v5, v5, v{ST3}")
        e(f"ds_write_b32 v6, v5 offset:{SCL}")
        e("s_waitcnt lgkmcnt(0)")
        e(f"ds_read_b128 {vq(SC)}, v7 offset:{SCL}")
        e(f"ds_read_b128 {vq(SC+4)}, v7 offset:{SCL+16}")
        c("CTXC write addr v6 = v*128 + (4r + idx(g))*2")
        e(f"v_lshlrev_b32 v6, 3, v{vR}")
        e(f"v_and_b32 v7, 1, v{vG}")
        e("v_lshl_add_u32 v6, v7, 2, v6")
        e(f"v_lshrrev_b32 v7, 1, v{vG}")
        e("v_lshl_add_u32 v6, v7, 1, v6")
        e(f"v_add_u32 v6, s{sA}, v6")
        e("s_waitcnt lgkmcnt(0)")
        for k in range(4):
            e(f"v_mul_f32 v{A0+k}, v{SC}, v{D3+k}")
        for t in range(1, 8):
            for k in range(4):
                e(f"v_fmac_f32 v{A0+k}, v{SC+t}, v{D3+4*t+k}")
        self.nop(1)
        e(f"v_permlane32_swap_b32 v{A0}, v{A0+1}")
        e(f"v_permlane32_swap_b32 v{A0+2}, v{A0+3}")
        e(f"v_add_f32 v{A0}, v{A0}, v{A0+1}")
        e(f"v_add_f32 v{A0+2}, v{A0+2}, v{A0+3}")
        self.nop(2)
        e(f"v_permlane16_swap_b32 v{A0}, v{A0+2}")
        e(f"v_add_f32 v{A0}, v{A0}, v{A0+2}")
        e(f"v_cvt_pk_bf16_f32 v{A0}, v{A0}, v{A0}")
        e(f"ds_write_b16 v6, v{A0} offset:{CTXC}")
        self.p3_addrs()
        e("s_waitcnt lgkmcnt(0)")
        e("s_barrier")
        self.ffn2()
        e("s_barrier")
        self.p3_tail(loader=False)

    def loader(self):
        o = self.o
        e, c, lab = self.e, self.c, self.lab
        nt = self.nt
        e("v_lshlrev_b32 v3, 2, v0")
        e(f"ds_write_b32 v3, v{vZ} offset:{HBUF}")
        e("s_mov_b64 exec, 0xff")
        e(f"ds_write_b32 v3, v{vZ} offset:{CNT}")
        e("s_mov_b64 exec, -1")
        e(f"s_mul_i32 s{sDM}, s{sU}, {32*ROW}")
        e(f"s_add_u32 s{sDM}, s{sDM}, {TILE}")
        e(f"s_lshl_b32 s{sDS}, s{sQ}, 17")
        e(f"s_lshl_b32 s{sA}, s{sU}, 15")
        e(f"s_add_u32 s{sDS}, s{sDS}, s{sA}")
        e("s_waitcnt lgkmcnt(0)")
        self.stamp(0)
        def dma(n):
            for k in range(n):
                e(f"s_mov_b32 m0, s{sDM}")
                e(f"s_add_u32 s{sDM}, s{sDM}, {ROW}")
                self.vmem(f"buffer_load_dwordx4 v{vL16}, {srd(CKV)}, s{sDS} offen{nt} lds", "dma")
                e(f"s_add_u32 s{sDS}, s{sDS}, 1024")
        XR = PV1; U = PV1 + 8
        e(f"s_lshl_b32 s{sA}, s{sU}, 10")
        self.vmem(f"buffer_load_dwordx4 {vq(XR)}, v{vL16}, {srd(X)}, s{sA} offen", "x")
        e(f"v_add_u32 v10, s{sA}, v{vL16}")
        e("s_barrier")
        self.wait_vm("x")
        self.layernorm_row(XR, U)
        e(f"ds_write_b128 v10, {vq(XR)} offset:{XNB}")
        self.cnt_signal(4, 3)
        self.p2_addrs()
        self.stamp(1)
        dma(32)
        self.stamp(2)
        self.wait_vm("dma")
        self.stamp(4)
        e("s_barrier")
        self.prereads()
        self.stamp(5)
        self.cnt_wait(2, 4, 3)
        e(f"ds_read_b64 v[10:11], v{vZ} offset:{NONCE}")
        e("s_waitcnt lgkmcnt(0)")
        self.decode_tags()
        self.stamp(6)
        self.p2(loader=True)
        e("s_barrier")
        c("w_uv dword loads: rows 64j + 32s + 8g + jj, cols 32u + 2r ; voff v3 = g*65536 + r*4")
        WUVR = ACC
        e(f"v_lshlrev_b32 v3, 16, v{vG}")
        e(f"v_lshl_add_u32 v3, v{vR}, 2, v3")
        e(f"s_lshl_b32 s{sA}, s{sJ}, 19")
        e(f"s_lshl_b32 s{sB}, s{sH}, 8")
        e(f"s_add_u32 s{sA}, s{sA}, s{sB}")
        e(f"s_lshl_b32 s{sB}, s{sU}, 6")
        e(f"s_add_u32 s{sA}, s{sA}, s{sB}")
        for s in range(2):
            for jj in range(8):
                self.vmem(f"buffer_load_dword v{WUVR+s*8+jj}, v3, {srd(WUV)}, s{sA} offen", "wuv")
                if not (s == 1 and jj == 7):
                    e(f"s_add_u32 s{sA}, s{sA}, {8192 if jj < 7 else 8192*25}")
        vB1 = 11
        e("v_lshrrev_b32 v4, 2, v0")
        e("v_and_b32 v4, 7, v4")
        e("v_lshlrev_b32 v4, 1, v4")
        e(f"s_lshl_b32 s{sC}, s{sF0}, 1")
        self.vmem(f"buffer_load_ushort v{vB1}, v4, {srd(B1)}, s{sC} offen", "wuv")
        self.bulk2()
        self.tr_addr()
        XF = PV1 + 48; W1F = WOR; FACC = WOR + 16; T = WOR + 20
        self.xn_addr(4)
        for s in range(4):
            e(f"ds_read_b128 {vq(XF+4*s)}, v4 offset:{XNB+64*s}")
        c("w1 tr addr v10 = W1L + (128u + 8g + rho)*16 + (kappa&1)*8")
        e(f"v_lshrrev_b32 v10, 2, v{vR}")
        e(f"v_lshl_add_u32 v10, v{vG}, 3, v10")
        e("v_lshlrev_b32 v10, 4, v10")
        e(f"v_and_b32 v4, 1, v{vR}")
        e("v_lshl_add_u32 v10, v4, 3, v10")
        e(f"s_lshl_b32 s{sA}, s{sU}, 11")
        e(f"v_add_u32 v10, s{sA}, v10")
        self.stamp(10)
        WUVF = PV1 + 16
        self.wait_vm("wuv")
        for s in range(2):
            for i in range(2):
                for t in range(4):
                    e(f"v_perm_b32 v{WUVF+(s*2+i)*4+t}, v{WUVR+s*8+2*t+1}, v{WUVR+s*8+2*t}, s{sPHI if i else sPLO}")
        self.wait_vm("bulk")
        self.stamp(11)
        e("s_barrier")
        c("FFN1 (loaders)")
        for s in range(4):
            for hf in range(2):
                e(f"ds_read_b64_tr_b16 {vq(W1F+4*s+2*hf,2)}, v10 offset:{W1L+(32*s+4*hf)*16}")
        e(f"s_lshl_b32 s{sA}, s{sU}, 8")
        e(f"v_lshlrev_b32 v4, 4, v{vR}")
        e(f"v_add_u32 v4, s{sA}, v4")
        e("s_waitcnt lgkmcnt(0)")
        for s in range(4):
            cc = "0" if s == 0 else vq(FACC)
            e(f"v_mfma_f32_16x16x32_bf16 {vq(FACC)}, {vq(XF+4*s)}, {vq(W1F+4*s)}, {cc}")
        e("s_mov_b64 exec, 0xffff")
        self.nop(8)
        e(f"ds_write_b128 v4, {vq(FACC)} offset:{RED2}")
        e("s_mov_b64 exec, -1")
        self.cnt_signal(3, 3)
        self.wo_tr()
        Lh = self.newlabel("L_hdone")
        e(f"s_cmp_lg_u32 s{sU}, 0")
        e(f"s_cbranch_scc1 {Lh}")
        self.cnt_wait(3, 4, 3)
        e("v_lshlrev_b32 v4, 2, v0")
        for k in range(4):
            e(f"ds_read_b32 v{T+k}, v4 offset:{RED2+256*k}")
        e("v_and_b32 v5, 3, v0")
        e("v_lshlrev_b32 v5, 6, v5")
        e("v_lshrrev_b32 v4, 2, v0")
        e("v_lshl_add_u32 v5, v4, 1, v5")
        e(f"v_lshlrev_b32 v{vB1}, 16, v{vB1}")
        e("s_waitcnt lgkmcnt(0)")
        e(f"v_add_f32 v{T}, v{T}, v{T+1}")
        e(f"v_add_f32 v{T+2}, v{T+2}, v{T+3}")
        e(f"v_add_f32 v{T}, v{T}, v{T+2}")
        e(f"v_cvt_pk_bf16_f32 v{T}, v{T}, v{T}")
        e(f"v_lshlrev_b32 v{T}, 16, v{T}")
        e(f"v_add_f32 v{T}, v{T}, v{vB1}")
        e(f"v_cvt_pk_bf16_f32 v{T}, v{T}, v{T}")
        e(f"v_lshlrev_b32 v{T}, 16, v{T}")
        e(f"v_max_f32 v{T}, 0, v{T}")
        e(f"v_mul_f32 v{T}, v{T}, v{T}")
        e(f"v_cvt_pk_bf16_f32 v{T}, v{T}, v{T}")
        e("s_cmp_lt_u32 s2, 224")
        e("s_cselect_b32 exec_lo, -1, 0")
        e("s_mov_b32 exec_hi, 0")
        e(f"ds_write_b16 v5, v{T} offset:{HBUF}")
        e("s_mov_b64 exec, -1")
        self.cnt_signal(5, 3)
        lab(Lh)
        self.cnt_wait(5, 1, 3)
        self.ffn2()
        self.p3_addrs()
        e(f"v_and_b32 v4, 3, v{vR}")
        e("v_lshlrev_b32 v3, 7, v4")
        e(f"v_lshl_add_u32 v3, v{vG}, 4, v3")
        e(f"s_lshl_b32 s{sB}, s{sU}, 6")
        e(f"v_add_u32 v4, s{sB}, v7")
        e("s_barrier")
        CF = PV1 + 32; CA = PV1 + 40
        for s in range(2):
            e(f"ds_read_b128 {vq(CF+4*s)}, v3 offset:{CTXC+64*s}")
        e("s_waitcnt lgkmcnt(0)")
        for s in range(2):
            for i in range(2):
                cc = "0" if s == 0 else vq(CA + 4 * i)
                e(f"v_mfma_f32_16x16x32_bf16 {vq(CA+4*i)}, {vq(WUVF+(s*2+i)*4)}, {vq(CF+4*s)}, {cc}")
        self.nop(8)
        for k in range(4):
            e(f"v_cvt_pk_bf16_f32 v{CF+k}, v{CA+k}, v{CA+4+k}")
        e(f"ds_write_b128 v4, {vq(CF)} offset:{CTX}")
        e("s_waitcnt lgkmcnt(0)")
        e("s_barrier")
        self.p3_tail(loader=True)

    def decode_tags(self):
        e = self.e
        e(f"v_readfirstlane_b32 s{sE}, v10")
        e(f"v_readfirstlane_b32 s{sF}, v11")
        self.nop(1)
        e(f"s_and_b32 s{sT[0]}, s{sE}, 0xfff")
        e(f"s_bfe_u32 s{sT[1]}, s{sE}, 0xc000c")
        e(f"s_lshr_b64 s[{sE}:{sF}], s[{sE}:{sF}], 24")
        e(f"s_and_b32 s{sT[2]}, s{sE}, 0xfff")
        e(f"s_bfe_u32 s{sT[3]}, s{sE}, 0xc000c")
        for k in range(4):
            e(f"v_mov_b32 v{vT[k]}, s{sT[k]}")
    def p2_addrs(self):
        e = self.e
        self.c("tr base v6 = TILE + (4g+rho)*ROW + 128w + 8kappa ; v7 = v6 + 64*ROW ; QK A addr v5 = TILE + (16w+r)*ROW + 16g")
        e(f"v_lshrrev_b32 v6, 2, v{vR}")
        e(f"v_lshl_add_u32 v6, v{vG}, 2, v6")
        e(f"v_mul_u32_u24 v6, {ROW}, v6")
        e(f"v_and_b32 v7, 3, v{vR}")
        e("v_lshl_add_u32 v6, v7, 3, v6")
        e(f"s_lshl_b32 s{sA}, s{sWAVE}, 7")
        e(f"s_add_u32 s{sA}, s{sA}, {TILE}")
        e(f"v_add_u32 v6, s{sA}, v6")
        e(f"v_add_u32 v7, {64*ROW}, v6")
        e(f"s_lshl_b32 s{sA}, s{sWAVE}, 4")
        e(f"v_add_u32 v5, s{sA}, v{vR}")
        e(f"v_mul_u32_u24 v5, {ROW}, v5")
        e(f"v_lshl_add_u32 v5, v{vG}, 4, v5")
        e(f"v_add_u32 v5, {TILE}, v5")
    def prereads(self):
        e = self.e
        for s in range(16):
            e(f"ds_read_b128 {vq(QKA+4*s)}, v5 offset:{64*s}")
        for t in range(4):
            for i in range(4):
                for hf in range(2):
                    base = 6 if t < 2 else 7
                    off = ((32 * (t & 1)) + 16 * hf) * ROW + 32 * i
                    e(f"ds_read_b64_tr_b16 {vq(PV1+(i*4+t)*4+2*hf,2)}, v{base} offset:{off}")
        e("s_waitcnt lgkmcnt(0)")
    def tr_addr(self):
        e = self.e
        self.c("tr base (natural k map) v6 = TILE + (8g+rho)*ROW + 128w + 8kappa ; v7 = v6 + 64*ROW ; w2: v5 = W2L + rho*ROW + 128w + 8kappa")
        e(f"v_lshrrev_b32 v5, 2, v{vR}")
        e(f"v_lshl_add_u32 v6, v{vG}, 3, v5")
        e(f"v_mul_u32_u24 v6, {ROW}, v6")
        e(f"v_mul_u32_u24 v5, {ROW}, v5")
        e(f"v_and_b32 v7, 3, v{vR}")
        e("v_lshlrev_b32 v7, 3, v7")
        e(f"s_lshl_b32 s{sA}, s{sWAVE}, 7")
        e(f"v_add_u32 v7, s{sA}, v7")
        e("v_add_u32 v5, v5, v7")
        e("v_add_u32 v6, v6, v7")
        e(f"v_add_u32 v6, {TILE}, v6")
        e(f"v_add_u32 v7, {64*ROW}, v6")
    def wo_dma(self, first, n, tag):
        e = self.e
        for k in range(n):
            e(f"s_mov_b32 m0, s{sDM}")
            e(f"s_add_u32 s{sDM}, s{sDM}, {ROW}")
            self.vmem(f"buffer_load_dwordx4 v{vL16}, {srd(WO)}, s{sDS} offen{self.nt} lds", tag)
            e(f"s_add_u32 s{sDS}, s{sDS}, 1024")
    def wo_setup(self, row0_sreg):
        e = self.e
        e(f"s_mul_i32 s{sDM}, s{row0_sreg}, {ROW}")
        e(f"s_add_u32 s{sDM}, s{sDM}, {TILE}")
        e(f"s_lshl_b32 s{sDS}, s{sH}, 7")
        e(f"s_add_u32 s{sDS}, s{sDS}, s{row0_sreg}")
        e(f"s_lshl_b32 s{sDS}, s{sDS}, 10")
    def bulk2(self):
        e = self.e
        o = self.o
        self.c("w1 image: rows 64w + lane, 16 B at col f0")
        e("v_mul_u32_u24 v3, 3584, v0")
        e(f"s_mul_i32 s{sA}, s{sWAVE}, {64*3584}")
        e(f"s_lshl_b32 s{sB}, s{sF0}, 1")
        e(f"s_add_u32 s{sA}, s{sA}, s{sB}")
        e(f"s_lshl_b32 s{sB}, s{sWAVE}, 10")
        e(f"s_add_u32 s{sB}, s{sB}, {W1L}")
        e(f"s_mov_b32 m0, s{sB}")
        e(f"s_add_u32 s{sB}, s{sF0}, s{sWAVE}")
        self.vmem(f"buffer_load_dwordx4 v3, {srd(W1)}, s{sA} offen lds", "bulk")
        e(f"s_lshl_b32 s{sB}, s{sB}, 10")
        e(f"s_mul_i32 s{sA}, s{sWAVE}, {ROW}")
        if W2L: e(f"s_add_u32 s{sA}, s{sA}, {W2L}")
        e(f"s_mov_b32 m0, s{sA}")
        e(f"s_nop 0")
        self.vmem(f"buffer_load_dwordx4 v{vL16}, {srd(W2)}, s{sB} offen{self.nt} lds", "bulk")
        n = (128 - 4 * o.wo_pre) // 8
        e(f"s_mul_i32 s{sA}, s{sWAVE}, {n}")
        e(f"s_add_u32 s{sA}, s{sA}, {4*o.wo_pre}")
        self.wo_setup(sA)
        self.wo_dma(0, n, "bulk")
    W2F = PV1
    def wo_tr(self):
        e = self.e
        for i in range(4):
            for hf in range(2):
                e(f"ds_read_b64_tr_b16 {vq(self.W2F+4*i+2*hf,2)}, v5 offset:{W2L+4*hf*ROW+32*i}")
        for s in range(4):
            for i in range(4):
                for hf in range(2):
                    base = 6 if s < 2 else 7
                    off = ((32 * (s & 1)) + 4 * hf) * ROW + 32 * i
                    e(f"ds_read_b64_tr_b16 {vq(QKA+(i*4+s)*4+2*hf,2)}, v{base} offset:{off}")
    def ffn2(self):
        e = self.e
        HF = vM + 24
        e(f"v_and_b32 v3, 3, v{vR}")
        e("v_lshlrev_b32 v3, 6, v3")
        e(f"v_lshl_add_u32 v3, v{vG}, 4, v3")
        e(f"ds_read_b128 {vq(HF)}, v3 offset:{HBUF}")
        e("s_waitcnt lgkmcnt(0)")
        for i in range(4):
            e(f"v_mfma_f32_16x16x32_bf16 {vq(ACC+4*i)}, {vq(self.W2F+4*i)}, {vq(HF)}, 0")
    def p2(self, loader):
        o = self.o
        e, c, lab = self.e, self.c, self.lab
        S = vM; BW = vM + 4
        c("=========== QK ===========  qc addr v10 = r*ROW + 16g")
        e(f"v_mul_u32_u24 v10, {ROW}, v{vR}")
        e(f"v_lshl_add_u32 v10, v{vG}, 4, v10")
        for s in range(6):
            e(f"ds_read_b128 {vq(BW+4*s)}, v10 offset:{QC+64*s}")
        c("MX write addr v11 = r*32 + w*4 ; read v4 = r*32 ; LS addr v3")
        e(f"v_lshlrev_b32 v4, 5, v{vR}")
        e(f"s_lshl_b32 s{sA}, s{sWAVE}, 2")
        e(f"v_add_u32 v11, s{sA}, v4")
        for s in range(16):
            e(f"s_waitcnt lgkmcnt({min(5, 15-s)})")
            cc = "0" if s == 0 else vq(S)
            e(f"v_mfma_f32_16x16x32_bf16 {vq(S)}, {vq(QKA+4*s)}, {vq(BW+4*(s%6))}, {cc}")
            if s + 6 < 16:
                e(f"ds_read_b128 {vq(BW+4*(s%6))}, v10 offset:{QC+64*(s+6)}")
        c("PBUF write addr v10 = (w>>1)*1024 + lane*16 + (w&1)*8")
        e(f"s_lshr_b32 s{sA}, s{sWAVE}, 1")
        e(f"s_lshl_b32 s{sA}, s{sA}, 10")
        e(f"s_and_b32 s{sB}, s{sWAVE}, 1")
        e(f"s_lshl_b32 s{sB}, s{sB}, 3")
        e(f"s_add_u32 s{sA}, s{sA}, s{sB}")
        e(f"v_add_u32 v10, s{sA}, v{vL16}")
        self.nop(2)
        e(f"v_max3_f32 v5, v{S}, v{S+1}, v{S+2}")
        e(f"v_max_f32 v5, v5, v{S+3}")
        self.cross_rows(5, 3, "v_max_f32")
        e(f"ds_write_b32 v11, v5 offset:{MX}")
        e("s_waitcnt lgkmcnt(0)")
        self.stamp(8)
        e("s_barrier")
        MXR = vM + 8
        e(f"ds_read_b128 {vq(MXR)}, v4 offset:{MX}")
        e(f"ds_read_b128 {vq(MXR+4)}, v4 offset:{MX+16}")
        if loader and o.wo_pre:
            e(f"s_mul_i32 s{sA}, s{sU}, {o.wo_pre}")
            self.wo_setup(sA)
            self.wo_dma(0, o.wo_pre, "bulk")
        c("TR3 write addr v6 = w*TRW + r*144 + 16g ; read v7 = w*TRW + (l>>3)*144 + (l&7)*16")
        e(f"s_mul_i32 s{sB}, s{sWAVE}, {TRW}")
        e(f"v_mul_u32_u24 v6, 144, v{vR}")
        e(f"v_lshl_add_u32 v6, v{vG}, 4, v6")
        e(f"v_add_u32 v6, s{sB}, v6")
        e("v_lshrrev_b32 v7, 3, v0")
        e("v_mul_u32_u24 v7, 144, v7")
        e("v_and_b32 v3, 7, v0")
        e("v_lshl_add_u32 v7, v3, 4, v7")
        e(f"v_add_u32 v7, s{sB}, v7")
        e("s_waitcnt lgkmcnt(0)")
        e(f"v_max3_f32 v5, v{MXR}, v{MXR+1}, v{MXR+2}")
        e(f"v_max3_f32 v3, v{MXR+3}, v{MXR+4}, v{MXR+5}")
        e(f"v_max3_f32 v5, v5, v{MXR+6}, v{MXR+7}")
        e("v_max_f32 v5, v5, v3")
        e(f"v_mul_f32 v5, s{sCS}, v5")
        for k in range(4):
            e(f"v_fma_f32 v{S+k}, v{S+k}, s{sCS}, -v5")
        for k in range(4):
            e(f"v_exp_f32 v{S+k}, v{S+k}")
        self.nop(1)
        e(f"v_pk_add_f32 {vq(MXR,2)}, {vq(S,2)}, {vq(S+2,2)}")
        e(f"v_cvt_pk_bf16_f32 v{S}, v{S}, v{S+1}")
        e(f"v_cvt_pk_bf16_f32 v{S+1}, v{S+2}, v{S+3}")
        e(f"ds_write_b64 v10, {vq(S,2)} offset:{PBUF}")
        e(f"v_add_f32 v{MXR}, v{MXR}, v{MXR+1}")
        self.cross_rows(MXR, MXR + 1, "v_add_f32")
        e(f"ds_write_b32 v11, v{MXR} offset:{LS}")
        c("H3 publish: voff v4 = (l>>3)*HS3 + (l&7)*16 ; sA = H3 + hg*16*HS3 + w*CS3 + bq*8192 + chunk*256 ; +8*HS3 -> sC")
        e("v_lshrrev_b32 v4, 3, v0")
        e(f"v_mul_u32_u24 v4, {HS3}, v4")
        e("v_and_b32 v3, 7, v0")
        e("v_lshl_add_u32 v4, v3, 4, v4")
        e(f"s_mul_i32 s{sA}, s{sHG}, {16*HS3}")
        e(f"s_mul_i32 s{sB}, s{sWAVE}, {CS3}")
        e(f"s_add_u32 s{sA}, s{sA}, s{sB}")
        e(f"s_lshl_b32 s{sB}, s{sBQ}, 13")
        e(f"s_add_u32 s{sA}, s{sA}, s{sB}")
        e(f"s_lshl_b32 s{sB}, s{sCHUNK}, 8")
        e(f"s_add_u32 s{sA}, s{sA}, s{sB}")
        e(f"s_add_u32 s{sA}, s{sA}, {H3_BASE}")
        e(f"s_add_u32 s{sC}, s{sA}, {8*HS3}")
        e("s_waitcnt lgkmcnt(0)")
        e("s_barrier")
        PF = vM; PACC = vM + 16
        for t in range(4):
            e(f"ds_read_b128 {vq(PF+4*t)}, v{vL16} offset:{PBUF+1024*t}")
        for t in range(4):
            e(f"s_waitcnt lgkmcnt({3-t})")
            for i in range(4):
                cc = "0" if t == 0 else vq(PACC + 4 * i)
                e(f"v_mfma_f32_16x16x32_bf16 {vq(PACC+4*i)}, {vq(PV1+(i*4+t)*4)}, {vq(PF+4*t)}, {cc}")
        self.nop(5)
        for rd in range(2):
            for i in range(2 * rd, 2 * rd + 2):
                for k in range(4):
                    e(f"v_bfi_b32 v{PACC+4*i+k}, s{sMASK}, v{PACC+4*i+k}, v{vT[k]}")
                e(f"ds_write_b128 v6, {vq(PACC+4*i)} offset:{TR3+64*(i&1)}")
            for k in range(2):
                e(f"ds_read_b128 {vq(PF+8*rd+4*k)}, v7 offset:{TR3+8*144*k}")
        for rd in range(2):
            for k in range(2):
                e(f"s_waitcnt lgkmcnt({[5,4,1,0][2*rd+k]})")
                self.vmem(f"buffer_store_dwordx4 {vq(PF+8*rd+4*k)}, v4, {srd(WS)}, s{sA if k == 0 else sC} offen offset:{128*rd} sc1", "pub3")
        if loader:
            Ls = self.newlabel("L_statdone")
            e(f"s_cmp_lg_u32 s{sWAVE}, 7")
            e(f"s_cbranch_scc1 {Ls}")
            ONES = PV1 + 56; LACC = PV1 + 48
            e(f"v_lshlrev_b32 v3, 5, v{vR}")
            e(f"ds_read_b128 {vq(LACC)}, v3 offset:{LS}")
            e(f"ds_read_b128 {vq(LACC+4)}, v3 offset:{LS+16}")
            e("s_waitcnt lgkmcnt(0)")
            e(f"v_pk_add_f32 {vq(LACC,2)}, {vq(LACC,2)}, {vq(LACC+2,2)}")
            e(f"v_pk_add_f32 {vq(LACC+4,2)}, {vq(LACC+4,2)}, {vq(LACC+6,2)}")
            e(f"v_pk_add_f32 {vq(LACC,2)}, {vq(LACC,2)}, {vq(LACC+4,2)}")
            e(f"v_add_f32 v{LACC}, v{LACC}, v{LACC+1}")
            c("addr voff = r*2048 ; soff = ST + hg*16*2048 + bq*512 + chunk*16")
            e(f"v_lshlrev_b32 v3, 11, v{vR}")
            e(f"s_lshl_b32 s{sA}, s{sHG}, 15")
            e(f"s_lshl_b32 s{sB}, s{sBQ}, 9")
            e(f"s_add_u32 s{sA}, s{sA}, s{sB}")
            e(f"s_lshl_b32 s{sB}, s{sCHUNK}, 4")
            e(f"s_add_u32 s{sA}, s{sA}, s{sB}")
            e(f"s_add_u32 s{sA}, s{sA}, {ST_BASE}")
            e(f"v_bfi_b32 v{ONES}, s{sMASK}, v5, v{vT[0]}")
            e(f"v_bfi_b32 v{ONES+1}, s{sMASK}, v{LACC}, v{vT[1]}")
            e(f"v_lshl_or_b32 v{ONES+2}, v5, 20, v{vT[2]}")
            e(f"v_lshl_or_b32 v{ONES+3}, v{LACC}, 20, v{vT[3]}")
            e("s_mov_b64 exec, 0xffff")
            e(f"buffer_store_dwordx4 {vq(ONES)}, v3, {srd(WS)}, s{sA} offen sc1")
            e("s_mov_b64 exec, -1")
            self.nop(2)
            lab(Ls)
        self.stamp(9)
    def p3_addrs(self):
        e = self.e
        self.c("ctx read v7 = (r&3)*256 + 16g ; H5 publish v6 = (r&3)*2048 + (r>>2)*64 + 16g ; sA = H5 + wg*PS5 + w*256")
        e(f"v_and_b32 v6, 3, v{vR}")
        e("v_lshlrev_b32 v7, 8, v6")
        e(f"v_lshl_add_u32 v7, v{vG}, 4, v7")
        e("v_lshlrev_b32 v6, 11, v6")
        e(f"v_lshl_add_u32 v6, v{vG}, 4, v6")
        e(f"v_lshrrev_b32 v5, 2, v{vR}")
        e("v_lshl_add_u32 v6, v5, 6, v6")
        e(f"s_mul_i32 s{sA}, s2, {PS5}")
        e(f"s_lshl_b32 s{sB}, s{sWAVE}, 8")
        e(f"s_add_u32 s{sA}, s{sA}, s{sB}")
        e(f"s_add_u32 s{sA}, s{sA}, {H5_BASE}")
        e(f"v_cmp_eq_u32 s[{sSEL}:{sSEL+1}], 1, v5")
        e(f"v_cmp_eq_u32 s[{sE}:{sF}], 2, v5")
        e(f"v_cmp_eq_u32 s[{sDS}:{sDM}], 3, v5")
    def p3_tail(self, loader):
        o = self.o
        e, c, lab = self.e, self.c, self.lab
        XF = vM
        for s in range(4):
            e(f"ds_read_b128 {vq(XF+4*s)}, v7 offset:{CTX+64*s}")
        for s in range(4):
            e(f"s_waitcnt lgkmcnt({3-s})")
            for i in range(4):
                e(f"v_mfma_f32_16x16x32_bf16 {vq(ACC+4*i)}, {vq(QKA+(i*4+s)*4)}, {vq(XF+4*s)}, {vq(ACC+4*i)}")
        G = vM + 16
        self.nop(6)
        for k in range(4):
            e(f"v_cndmask_b32 v{G+k}, v{ACC+k}, v{ACC+4+k}, s[{sSEL}:{sSEL+1}]")
        for k in range(4):
            e(f"v_cndmask_b32 v{G+k}, v{G+k}, v{ACC+8+k}, s[{sE}:{sF}]")
        for k in range(4):
            e(f"v_cndmask_b32 v{G+k}, v{G+k}, v{ACC+12+k}, s[{sDS}:{sDM}]")
        for i in range(4):
            e(f"v_bfi_b32 v{G+i}, s{sMASK}, v{G+i}, v{vT[i]}")
        self.vmem(f"buffer_store_dwordx4 {vq(G)}, v6, {srd(WS)}, s{sA} offen sc1", "pub5")
        self.stamp(13)
        Lx = self.newlabel("L_exit")
        e("s_cmp_ge_u32 s2, 64")
        e(f"s_cbranch_scc1 {Lx}")
        e("v_lshrrev_b32 v10, 3, v0")
        e(f"v_mul_u32_u24 v10, {PS5}, v10")
        e("v_and_b32 v11, 7, v0")
        e("v_lshl_add_u32 v10, v11, 4, v10")
        e(f"s_mul_i32 s{sB}, s{sWAVE}, {32*PS5}")
        e(f"s_lshl_b32 s{sD}, s2, 7")
        e(f"s_add_u32 s{sB}, s{sB}, s{sD}")
        e(f"s_add_u32 s{sB}, s{sB}, {H5_BASE}")
        bases = [sB, sC, sDS, sDM]
        for t in range(1, 4): e(f"s_add_u32 s{bases[t]}, s{sB}, {t*8*PS5}")
        vXB = WOR
        if not loader:
            e("v_and_b32 v7, 31, v0")
            e("v_lshlrev_b32 v7, 1, v7")
            e(f"s_lshl_b32 s{sA}, s2, 6")
            e(f"s_and_b32 s{sD}, s{sA}, 1023")
            self.vmem(f"buffer_load_ushort v{vXB}, v7, {srd(X)}, s{sA} offen", "xb")
            self.vmem(f"buffer_load_ushort v{vXB+1}, v7, {srd(B2)}, s{sD} offen", "xb")
        if o.d5: e(f"s_sleep {o.d5}")
        G5 = QKA
        loads = [[f"buffer_load_dwordx4 {vq(G5+4*t)}, v10, {srd(WS)}, s{bases[t]} offen sc1"] for t in range(4)]
        self.issue(loads, "h5")
        self.gather(loads, [G5 + 4 * t for t in range(4)], 3, "h5")
        self.stamp(14)
        e(f"v_pk_add_f32 {vq(G5,2)}, {vq(G5,2)}, {vq(G5+4,2)}")
        e(f"v_pk_add_f32 {vq(G5+2,2)}, {vq(G5+2,2)}, {vq(G5+6,2)}")
        e(f"v_pk_add_f32 {vq(G5+8,2)}, {vq(G5+8,2)}, {vq(G5+12,2)}")
        e(f"v_pk_add_f32 {vq(G5+10,2)}, {vq(G5+10,2)}, {vq(G5+14,2)}")
        e(f"v_pk_add_f32 {vq(G5,2)}, {vq(G5,2)}, {vq(G5+8,2)}")
        e(f"v_pk_add_f32 {vq(G5+2,2)}, {vq(G5+2,2)}, {vq(G5+10,2)}")
        e("v_lshlrev_b32 v11, 4, v11")
        e(f"v_and_b32 v4, 1, v{vG}")
        e(f"v_permlane32_swap_b32 v{G5}, v{G5+1}")
        e(f"v_permlane32_swap_b32 v{G5+2}, v{G5+3}")
        e(f"v_add_f32 v{G5}, v{G5}, v{G5+1}")
        e(f"v_add_f32 v{G5+2}, v{G5+2}, v{G5+3}")
        e("v_lshl_add_u32 v11, v4, 3, v11")
        e(f"v_lshrrev_b32 v4, 1, v{vG}")
        e(f"v_permlane16_swap_b32 v{G5}, v{G5+2}")
        e(f"v_add_f32 v{G5}, v{G5}, v{G5+2}")
        e("v_lshl_add_u32 v11, v4, 2, v11")
        e(f"s_lshl_b32 s{sC}, s{sWAVE}, 7")
        e(f"v_add_f32 v{G5}, v{G5}, v{G5} row_ror:8")
        e(f"v_add_u32 v11, s{sC}, v11")
        e(f"ds_write_b32 v11, v{G5} offset:{FIN}")
        e("s_waitcnt lgkmcnt(0)")
        e("s_barrier")
        if not loader:
            Lf = self.newlabel("L_fin")
            e(f"s_cmp_lg_u32 s{sWAVE}, 0")
            e(f"s_cbranch_scc1 {Lf}")
            e("v_lshlrev_b32 v11, 1, v7")
            for k in range(8):
                e(f"ds_read_b32 v{G5+k}, v11 offset:{FIN+128*k}")
            e(f"v_lshlrev_b32 v{vXB}, 16, v{vXB}")
            e(f"v_lshlrev_b32 v{vXB+1}, 16, v{vXB+1}")
            e(f"v_add_f32 v{vXB}, v{vXB}, v{vXB+1}")
            e("s_waitcnt lgkmcnt(0)")
            for k in range(4):
                e(f"v_add_f32 v{G5+k}, v{G5+k}, v{G5+k+4}")
            e(f"v_add_f32 v{G5}, v{G5}, v{G5+2}")
            e(f"v_add_f32 v{G5+1}, v{G5+1}, v{G5+3}")
            e(f"v_add_f32 v{G5}, v{G5}, v{G5+1}")
            e(f"v_add_f32 v{G5}, v{G5}, v{vXB}")
            e(f"v_cvt_pk_bf16_f32 v{G5}, v{G5}, v{G5}")
            e("s_mov_b64 exec, 0xffffffff")
            e(f"buffer_store_short v{G5}, v7, {srd(OUT)}, s{sA} offen")
            e("s_mov_b64 exec, -1")
            lab(Lf)
        lab(Lx)
        if o.stamps:
            e(f"s_memrealtime s[{sE}:{sF}]")
            e("s_waitcnt lgkmcnt(0)")
            Ls = self.newlabel("L_nostamp")
            e(f"s_cmp_lg_u32 s{sU}, 0")
            e(f"s_cbranch_scc1 {Ls}")
            for k in range(15):
                e(f"v_mov_b32 v{QKA+k}, s{sSTAMP0+k}")
            e(f"v_mov_b32 v{QKA+15}, s{sE}")
            e(f"v_mov_b32 v{QKA+16}, s{sSPIN}")
            e(f"s_lshl_b32 s{sA}, s2, 8")
            e(f"s_lshl_b32 s{sB}, s{sWAVE}, 5")
            e(f"s_add_u32 s{sA}, s{sA}, s{sB}")
            e(f"s_add_u32 s{sA}, s{sA}, {STAMP_BASE}")
            e("s_mov_b64 exec, 1")
            for k in range(5):
                e(f"buffer_store_dwordx4 {vq(QKA+4*k)}, v{vZ}, {srd(WS)}, s{sA} offen offset:{16*k}")
            e("s_mov_b64 exec, -1")
            lab(Ls)

def generate(opt):
    g = Gen(opt)
    g.build()
    hdr = open(f"cdna_kernels/{NAME}.s.ref").read().split(".amdgcn_target")[0]
    hdr = hdr.replace("grid=(8,1,1) block=(256,1,1) lds=0", f"grid=(256,1,1) block=(512,1,1) lds={LDS_BYTES}")
    s = hdr + f""".amdgcn_target "amdgcn-amd-amdhsa--gfx950"
.text
.globl {NAME}_kernel
.p2align 8
.type {NAME}_kernel,@function
{NAME}_kernel:
""" + "\n".join(g.L) + f"""
.section .rodata,"a"
.p2align 6
.amdhsa_kernel {NAME}_kernel
  .amdhsa_next_free_vgpr 256
  .amdhsa_next_free_sgpr 102
  .amdhsa_accum_offset 256
  .amdhsa_group_segment_fixed_size 0
  .amdhsa_kernarg_size 112
  .amdhsa_user_sgpr_count 2
  .amdhsa_user_sgpr_kernarg_segment_ptr 1
  .amdhsa_system_sgpr_workgroup_id_x 1
.end_amdhsa_kernel
"""
    return s

if __name__ == "__main__":
    opt = Opt()
    out = f"cdna_kernels/{NAME}.s"
    for a in sys.argv[1:]:
        if a == "--stamps": opt.stamps = True
        elif a.startswith("--out="): out = a[6:]
        elif a.startswith("--") and "=" in a:
            k, v = a[2:].split("="); setattr(opt, k, int(v))
    open(out, "w").write(generate(opt))
    print("wrote", out)
```

```python
import sys, struct

NAME = "parallel_sum__compressed_kv_cla__dense_activation_squared_relu__decode"

def f32bits(x):
    return struct.unpack("<I", struct.pack("<f", x))[0]

class Opt:
    stamps = False
    spin_limit = 1 << 16
    d2 = 20
    d3 = 10
    d5 = 25
    nt = 1
    wo_pre = 8
    gate = 1
    thr = 8
    thr2 = 4
    dbg = 0
    sig_at = 7
    rot = 1
    dn = 4
    wo_pf = 1
    d3 = 30

H2_BASE = 0
H3_BASE = 0x100000
CS3 = 16384
HS3 = 8 * CS3
ST_BASE = 0x900000
H5_BASE = 0xA00000
PS5 = 8192 + 128
STAMP_BASE = 0x1000000
ROW = 1056
QC = 0
RED = 0
TR3 = 0
TRW = 2304
W2L = 0
W1L = 8448
RED2 = 16640
FIN = 17664 - 1024
XNB = 18432
PBUF = 22528
QBF = 22528
CTXC = 22528
CTX = 23040
SCL = 24064
MX = 26624
LS = 27136
HBUF = 27648
NONCE = 27904
CNT = 27920
TILE = 28672
LDS_BYTES = TILE + 128 * ROW
assert LDS_BYTES == 163840

X, CKV, WQ, WUK, WUV, WO, W1, B1, W2, B2, OUT, DBG, WS = [4 + 4 * i for i in range(13)]
sWAVE, sH, sJ, sBQ, sCHUNK, sHG, sQ, sF0 = range(56, 64)
sT = [64, 65, 66, 67]
sMASK, sPLO, sPHI, sCS = 68, 69, 70, 71
sA, sB, sC, sD, sE, sF = 72, 73, 74, 75, 76, 77
sDS, sDM = 78, 79
sSEL = 80
sSPIN = 82
sU = 83
sSTAMP0 = 84
sG = 100
sBT = [84, 85, 86, 87]
sM0, sM1, sM2, sMAG = 88, 89, 90, 91
sSTAMP0 = 92
vST = 255
vL, vR, vG = 0, 1, 2
vL16, vZ = 8, 9
vT = [12, 13, 14, 15]
vBT = [250, 251, 252, 253]
ACC = 16
QKA = 32
WOR = 96
PV1 = 160
vM = 224

def srd(b): return f"s[{b}:{b+3}]"
def vq(b, n=4): return f"v[{b}:{b+n-1}]"

class Gen:
    def __init__(self, opt):
        self.o = opt
        self.L = []
        self.nlabel = 0
        self.vm = []
        self.nt = " nt" if opt.nt else ""
    def e(self, s): self.L.append("    " + s)
    def lab(self, s): self.L.append(s + ":")
    def c(self, s): self.L.append("    ; " + s)
    def newlabel(self, p="L"):
        self.nlabel += 1
        return f"{p}_{self.nlabel}"
    def vmem(self, s, tag):
        self.e(s); self.vm.append(tag)
    def wait_vm(self, tag, extra=""):
        idx = max(i for i, t in enumerate(self.vm) if t == tag)
        n = len(self.vm) - 1 - idx
        assert n <= 63, (tag, n)
        self.e(f"s_waitcnt vmcnt({n}){extra}")
    def stamp(self, idx):
        if not self.o.stamps: return
        self.e(f"s_memrealtime s[{sE}:{sF}]")
        self.e("s_waitcnt lgkmcnt(0)")
        self.e(f"v_writelane_b32 v{vST}, s{sE}, {idx}")
    def nop(self, n):
        while n > 0:
            k = min(n, 16)
            self.e(f"s_nop {k-1}")
            n -= k
    def allreduce_mod4(self, v, tmp, op="v_add_f32"):
        e = self.e
        self.nop(2)
        e(f"{op} v{v}, v{v}, v{v} row_ror:4")
        self.nop(2)
        e(f"{op} v{v}, v{v}, v{v} row_ror:8")
        self.cross_rows(v, tmp, op)
    def cross_rows(self, v, tmp, op, do32=True):
        e = self.e
        e(f"v_mov_b32 v{tmp}, v{v}")
        self.nop(2)
        e(f"v_permlane16_swap_b32 v{v}, v{tmp}")
        e(f"{op} v{v}, v{v}, v{tmp}")
        if do32:
            e(f"v_mov_b32 v{tmp}, v{v}")
            self.nop(2)
            e(f"v_permlane32_swap_b32 v{v}, v{tmp}")
            e(f"{op} v{v}, v{v}, v{tmp}")
    def cnt_signal(self, k, vtmp):
        e = self.e
        e(f"v_mov_b32 v{vtmp}, 1")
        e("s_mov_b64 exec, 1")
        e(f"ds_add_u32 v{vZ}, v{vtmp} offset:{CNT+4*k}")
        e("s_mov_b64 exec, -1")
    def cnt_wait(self, k, target, vtmp):
        e = self.e
        Lp = self.newlabel("L_cw"); Lo = self.newlabel("L_cwok")
        self.lab(Lp)
        e(f"ds_read_b32 v{vtmp}, v{vZ} offset:{CNT+4*k}")
        e(f"s_add_u32 s{sSPIN}, s{sSPIN}, 1")
        e(f"s_cmp_gt_u32 s{sSPIN}, 0x60000000")
        e(f"s_cbranch_scc1 {Lo}")
        e("s_waitcnt lgkmcnt(0)")
        e(f"v_readfirstlane_b32 s{sG}, v{vtmp}")
        e(f"s_cmp_ge_u32 s{sG}, {target}")
        e(f"s_cbranch_scc0 {Lp}")
        self.lab(Lo)
        e("s_waitcnt lgkmcnt(0)")
    def check_quad(self, q, vacc):
        e = self.e
        for k in range(4):
            e(f"v_xor_b32 v{q+k}, s{sT[k]}, v{q+k}")
        e(f"v_or3_b32 v{vacc}, v{q}, v{q+1}, v{q+2}")
        e(f"v_or_b32 v{vacc}, v{vacc}, v{q+3}")
        e(f"v_and_b32 v{vacc}, 0xfff, v{vacc}")
        e(f"v_cmp_ne_u32 vcc, 0, v{vacc}")
    def gather(self, loads, regs, vacc, tag, bfp=0):
        e, lab = self.e, self.lab
        n = len(loads)
        sP = sG + 1
        Ltop = self.newlabel("L_g"); Ldone = self.newlabel("L_gdone")
        e(f"s_mov_b32 s{sP}, {(1 << n) - 1}")
        self.wait_vm(tag)
        lab(Ltop)
        for k in range(n):
            Ls = self.newlabel("L_gs")
            e(f"s_bitcmp1_b32 s{sP}, {k}")
            e(f"s_cbranch_scc0 {Ls}")
            if k < bfp: self.check_bfp(regs[k], vacc, vacc + 1)
            else: self.check_quad(regs[k], vacc)
            e(f"s_bitset0_b32 s{sP}, {k}")
            e(f"s_cbranch_vccz {Ls}")
            e(f"s_bitset1_b32 s{sP}, {k}")
            for l in loads[k]: e(l)
            lab(Ls)
        e(f"s_cmp_eq_u32 s{sP}, 0")
        e(f"s_cbranch_scc1 {Ldone}")
        e(f"s_add_u32 s{sSPIN}, s{sSPIN}, 0x10000")
        e(f"s_cmp_gt_u32 s{sSPIN}, 0x40000000")
        e(f"s_cbranch_scc1 {Ldone}")
        e("s_waitcnt vmcnt(0)")
        e(f"s_branch {Ltop}")
        lab(Ldone)
    def issue(self, loads, tag):
        for l in loads:
            for x in l[:-1]: self.e(x)
            self.vmem(l[-1], tag)

    def build(self):
        o = self.o
        e, c, lab = self.e, self.c, self.lab
        e("s_cmp_ge_u32 s2, 256")
        e("s_cbranch_scc1 L_end")
        offs = {X: 0, CKV: 8, WQ: 16, WUK: 24, WUV: 32, WO: 40, W1: 56, B1: 64, W2: 72, B2: 80, OUT: 88, DBG: 96, WS: 104}
        sizes = {X: 4096, CKV: 16 << 20, WQ: 4 << 20, WUK: 4 << 20, WUV: 4 << 20, WO: 4 << 20,
                 W1: 512 * 1792 * 2, B1: 1792 * 2, W2: 1792 * 512 * 2, B2: 1024, OUT: 4096, DBG: 256, WS: 1 << 28}
        for b in (X, DBG, WQ, WUK, CKV, WS, WO, W1, W2, B1, WUV, B2, OUT):
            e(f"s_load_dwordx2 s[{b}:{b+1}], s[0:1], {offs[b]}")
        for b in offs:
            e(f"s_mov_b32 s{b+2}, 0x{sizes[b]:x}")
            e(f"s_mov_b32 s{b+3}, 0x00020000")
        e("v_lshrrev_b32 v3, 6, v0")
        e("v_and_b32 v0, 63, v0")
        e(f"v_readfirstlane_b32 s{sWAVE}, v3")
        e(f"v_and_b32 v{vR}, 15, v0")
        e(f"v_lshrrev_b32 v{vG}, 4, v0")
        e(f"s_and_b32 s{sA}, s2, 7")
        e(f"s_lshr_b32 s{sB}, s2, 3")
        e(f"s_lshr_b32 s{sC}, s{sB}, 3")
        e(f"s_lshl_b32 s{sH}, s{sA}, 2")
        e(f"s_add_u32 s{sH}, s{sH}, s{sC}")
        e(f"s_and_b32 s{sJ}, s{sB}, 7")
        e(f"s_lshr_b32 s{sC}, s{sB}, 1")
        e(f"s_lshl_b32 s{sQ}, s{sA}, 4")
        e(f"s_add_u32 s{sQ}, s{sQ}, s{sC}")
        e(f"s_and_b32 s{sHG}, s{sB}, 1")
        e(f"s_lshr_b32 s{sBQ}, s{sQ}, 5")
        e(f"s_and_b32 s{sCHUNK}, s{sQ}, 31")
        e(f"s_mul_i32 s{sF0}, s{sA}, 28")
        e(f"s_add_u32 s{sF0}, s{sF0}, s{sB}")
        e(f"s_lshl_b32 s{sF0}, s{sF0}, 3")
        e(f"s_cmp_lt_u32 s{sB}, 28")
        e(f"s_cselect_b32 s{sF0}, s{sF0}, 1792")
        e(f"s_mov_b32 s{sMASK}, 0xfffff000")
        e(f"s_mov_b32 s{sPLO}, 0x05040100")
        e(f"s_mov_b32 s{sPHI}, 0x07060302")
        e(f"s_mov_b32 s{sCS}, 0x{f32bits(128 ** -0.5 * 1.4426950408889634):08x}")
        e(f"s_mov_b32 s{sSPIN}, 0")
        e(f"s_mov_b32 s{sM0}, 0x3ff")
        e(f"s_mov_b32 s{sM1}, 0xffc00")
        e(f"s_mov_b32 s{sM2}, 0x3ff00000")
        e(f"s_mov_b32 s{sMAG}, 0x4b400000")
        e(f"s_and_b32 s{sU}, s{sWAVE}, 3")
        e(f"v_lshlrev_b32 v{vL16}, 4, v0")
        e(f"v_mov_b32 v{vZ}, 0")
        if o.stamps:
            e(f"v_mov_b32 v{vST}, 0")
        e(f"s_cmp_ge_u32 s{sWAVE}, 4")
        e("s_cbranch_scc1 L_loader")
        self.vm = []
        self.light()
        e("s_branch L_end")
        lab("L_loader")
        self.vm = []
        self.loader()
        lab("L_end")
        e("s_endpgm")

    def layernorm_row(self, XR, U):
        e = self.e
        def allreduce64(v, tmp):
            for rr in (1, 2, 4, 8):
                self.nop(2)
                e(f"v_add_f32 v{v}, v{v}, v{v} row_ror:{rr}")
            self.cross_rows(v, tmp, "v_add_f32")
        for k in range(4):
            e(f"v_lshlrev_b32 v{U+2*k}, 16, v{XR+k}")
            e(f"v_and_b32 v{U+2*k+1}, 0xffff0000, v{XR+k}")
        e(f"v_pk_add_f32 v[4:5], {vq(U,2)}, {vq(U+2,2)}")
        e(f"v_pk_add_f32 v[6:7], {vq(U+4,2)}, {vq(U+6,2)}")
        e("v_pk_add_f32 v[4:5], v[4:5], v[6:7]")
        e("v_add_f32 v4, v4, v5")
        allreduce64(4, 5)
        e(f"v_mul_f32 v4, 0x{f32bits(1/512):08x}, v4")
        for k in range(8):
            e(f"v_sub_f32 v{U+8+k}, v{U+k}, v4")
        e(f"v_mul_f32 v6, v{U+8}, v{U+8}")
        e(f"v_mul_f32 v7, v{U+9}, v{U+9}")
        for k in range(1, 4):
            e(f"v_fmac_f32 v6, v{U+8+2*k}, v{U+8+2*k}")
            e(f"v_fmac_f32 v7, v{U+9+2*k}, v{U+9+2*k}")
        e("v_add_f32 v6, v6, v7")
        allreduce64(6, 5)
        e(f"v_mul_f32 v6, 0x{f32bits(1/512):08x}, v6")
        e("v_cvt_pk_bf16_f32 v4, v4, v6")
        e("v_and_b32 v6, 0xffff0000, v4")
        e("v_lshlrev_b32 v4, 16, v4")
        e(f"v_add_f32 v6, 0x{f32bits(1e-5):08x}, v6")
        e("v_cvt_pk_bf16_f32 v6, v6, v6")
        e("v_lshlrev_b32 v6, 16, v6")
        e("v_sqrt_f32 v6, v6")
        for k in range(8):
            e(f"v_sub_f32 v{U+k}, v{U+k}, v4")
        e("v_cvt_pk_bf16_f32 v6, v6, v6")
        e("v_lshlrev_b32 v6, 16, v6")
        e("v_rcp_f32 v6, v6")
        for k in range(4):
            e(f"v_cvt_pk_bf16_f32 v{XR+k}, v{U+2*k}, v{U+2*k+1}")
        for k in range(4):
            e(f"v_lshlrev_b32 v{U+2*k}, 16, v{XR+k}")
            e(f"v_and_b32 v{U+2*k+1}, 0xffff0000, v{XR+k}")
        for k in range(8):
            e(f"v_mul_f32 v{U+k}, v{U+k}, v6")
        for k in range(4):
            e(f"v_cvt_pk_bf16_f32 v{XR+k}, v{U+2*k}, v{U+2*k+1}")

    def xn_addr(self, v):
        e = self.e
        e(f"v_and_b32 v{v}, 3, v{vR}")
        e(f"v_lshlrev_b32 v{v}, 10, v{v}")
        e(f"v_lshl_add_u32 v{v}, v{vG}, 4, v{v}")
        e(f"s_lshl_b32 s{sA}, s{sU}, 8")
        e(f"v_add_u32 v{v}, s{sA}, v{v}")

    def light(self):
        o = self.o
        e, c, lab = self.e, self.c, self.lab
        nt = self.nt
        XN = ACC
        WQR = WOR
        WQT = PV1
        QACC = PV1 + 16
        WUKF = vM
        vNON = 10
        e(f"v_lshlrev_b32 v5, 16, v{vG}")
        e(f"v_lshl_add_u32 v5, v{vR}, 3, v5")
        e(f"v_lshlrev_b32 v6, 13, v{vR}")
        e(f"v_lshl_add_u32 v6, v{vG}, 4, v6")
        e("s_waitcnt lgkmcnt(0)")
        self.stamp(0)
        Lskip = self.newlabel("L_nonce")
        e("s_cmp_ge_u32 s2, 8")
        e(f"s_cbranch_scc1 {Lskip}")
        e(f"s_cmp_lg_u32 s{sWAVE}, 3")
        e(f"s_cbranch_scc1 {Lskip}")
        e(f"s_memrealtime s[{sE}:{sF}]")
        e("v_mov_b32 v18, 0")
        e("v_mov_b32 v19, 0")
        e("s_waitcnt lgkmcnt(0)")
        e(f"s_or_b32 s{sF}, s{sF}, 0x80000000")
        e(f"v_mov_b32 v16, s{sE}")
        e(f"v_mov_b32 v17, s{sF}")
        e("s_mov_b64 exec, 1")
        e(f"buffer_atomic_cmpswap_x2 v[16:19], v{vZ}, {srd(DBG)}, 0 offen sc1")
        e("s_mov_b64 exec, -1")
        lab(Lskip)
        e("s_barrier")
        e(f"s_lshl_b32 s{sB}, s{sH}, 8")
        e(f"s_and_b32 s{sC}, s{sJ}, 1")
        e(f"s_lshl_b32 s{sC}, s{sC}, 7")
        e(f"s_add_u32 s{sB}, s{sB}, s{sC}")
        c("w_uk rows c = 128cq + 32v + 16 tile + r")
        e(f"s_lshr_b32 s{sA}, s{sJ}, 1")
        e(f"s_lshl_b32 s{sA}, s{sA}, 20")
        e(f"s_lshl_b32 s{sC}, s{sWAVE}, 18")
        e(f"s_add_u32 s{sA}, s{sA}, s{sC}")
        e(f"s_add_u32 s{sA}, s{sA}, s{sB}")
        e(f"s_add_u32 s{sC}, s{sA}, {16*8192}")
        for tl in range(2):
            for s in range(2):
                self.vmem(f"buffer_load_dwordx4 {vq(WUKF+(tl*2+s)*4)}, v6, {srd(WUK)}, s{sA if tl == 0 else sC} offen offset:{64*s}{nt}", "wuk")
        e(f"s_lshl_b32 s{sD}, s{sWAVE}, 20")
        e(f"s_add_u32 s{sD}, s{sD}, s{sB}")
        e(f"s_lshr_b32 s{sC}, s{sJ}, 1")
        if not o.rot: e(f"s_mov_b32 s{sC}, 0")
        for s in range(4):
            e(f"s_add_u32 s{sA}, s{sC}, {s}")
            e(f"s_and_b32 s{sA}, s{sA}, 3")
            e(f"s_lshl_b32 s{sA}, s{sA}, 18")
            e(f"s_add_u32 s{sA}, s{sA}, s{sD}")
            for jj in range(8):
                self.vmem(f"buffer_load_dwordx2 {vq(WQR+(s*8+jj)*2,2)}, v5, {srd(WQ)}, s{sA} offen{nt}", f"wq{s}")
                if jj < 7: e(f"s_add_u32 s{sA}, s{sA}, 8192")
        self.stamp(1)
        if o.gate == 0: self.cnt_signal(6, 3)
        self.xn_addr(4)
        self.cnt_wait(4, 4, 3)
        for s in range(4):
            e(f"s_add_u32 s{sA}, s{sC}, {s}")
            e(f"s_and_b32 s{sA}, s{sA}, 3")
            e(f"s_lshl_b32 s{sA}, s{sA}, 6")
            e(f"v_add_u32 v5, s{sA}, v4")
            e(f"ds_read_b128 {vq(XN+4*s)}, v5 offset:{XNB}")
        c("RED write addr v5 = v*1024 + r*64")
        e(f"s_lshl_b32 s{sA}, s{sWAVE}, 10")
        e(f"v_lshlrev_b32 v5, 6, v{vR}")
        e(f"v_add_u32 v5, s{sA}, v5")
        self.stamp(2)
        for s in range(4):
            self.wait_vm(f"wq{s}", " lgkmcnt(0)" if s == 0 else "")
            if o.gate == s + 1: self.cnt_signal(6, 3)
            for i in range(4):
                for t in range(4):
                    lo = WQR + (s * 8 + 2 * t) * 2 + (i >> 1)
                    hi = WQR + (s * 8 + 2 * t + 1) * 2 + (i >> 1)
                    e(f"v_perm_b32 v{WQT+i*4+t}, v{hi}, v{lo}, s{sPHI if i & 1 else sPLO}")
            self.nop(1)
            for i in range(4):
                cc = "0" if s == 0 else vq(QACC + 4 * i)
                e(f"v_mfma_f32_16x16x32_bf16 {vq(QACC+4*i)}, {vq(XN+4*s)}, {vq(WQT+i*4)}, {cc}")
        self.stamp(3)
        e("s_mov_b64 exec, 0xffff")
        self.nop(5)
        for i in range(4):
            e(f"ds_write_b128 v5, {vq(QACC+4*i)} offset:{RED+16*i}")
        e("s_mov_b64 exec, -1")
        self.cnt_signal(0, 3)
        c("stage1: t = 64v+lane: d=t>>2, b=t&3 ; read RED + t*4 + k*1024 ; write QBF + b*128 + d*2")
        e(f"s_lshl_b32 s{sA}, s{sWAVE}, 8")
        e("v_lshlrev_b32 v6, 2, v0")
        e(f"v_add_u32 v6, s{sA}, v6")
        e("v_and_b32 v5, 3, v0")
        e("v_lshlrev_b32 v5, 7, v5")
        e("v_lshrrev_b32 v4, 2, v0")
        e("v_lshl_add_u32 v5, v4, 1, v5")
        e(f"s_lshl_b32 s{sA}, s{sWAVE}, 5")
        e(f"v_add_u32 v5, s{sA}, v5")
        self.cnt_wait(8, 1, 3)
        e(f"ds_read_b64 v[10:11], v{vZ} offset:{NONCE}")
        e("s_waitcnt lgkmcnt(0)")
        self.decode_tags()
        self.cnt_wait(0, 4, 3)
        for k in range(4):
            e(f"ds_read_b32 v{WQT+k}, v6 offset:{RED+1024*k}")
        e("s_waitcnt lgkmcnt(0)")
        e(f"v_add_f32 v{WQT}, v{WQT}, v{WQT+1}")
        e(f"v_add_f32 v{WQT+2}, v{WQT+2}, v{WQT+3}")
        e(f"v_add_f32 v{WQT}, v{WQT}, v{WQT+2}")
        e(f"v_cvt_pk_bf16_f32 v{WQT}, v{WQT}, v{WQT}")
        e(f"ds_write_b16 v5, v{WQT} offset:{QBF}")
        self.cnt_signal(1, 3)
        c("q frag addr v4 = (r&3)*128 + 16g ; publish voff v5 = (r&3)*32768 + 16g")
        e(f"v_and_b32 v6, 3, v{vR}")
        e("v_lshlrev_b32 v4, 7, v6")
        e(f"v_lshl_add_u32 v4, v{vG}, 4, v4")
        e("v_lshlrev_b32 v5, 15, v6")
        e(f"v_lshl_add_u32 v5, v{vG}, 4, v5")
        c("soff = dhalf*131072 + h*1024 + cq*256 + v*64")
        e(f"s_and_b32 s{sA}, s{sJ}, 1")
        e(f"s_lshl_b32 s{sA}, s{sA}, 17")
        e(f"s_lshl_b32 s{sB}, s{sH}, 10")
        e(f"s_add_u32 s{sA}, s{sA}, s{sB}")
        e(f"s_lshr_b32 s{sB}, s{sJ}, 1")
        e(f"s_lshl_b32 s{sB}, s{sB}, 8")
        e(f"s_add_u32 s{sA}, s{sA}, s{sB}")
        e(f"s_lshl_b32 s{sB}, s{sWAVE}, 6")
        e(f"s_add_u32 s{sA}, s{sA}, s{sB}")
        self.cnt_wait(1, 4, 3)
        QF = WQT
        for s in range(2):
            e(f"ds_read_b128 {vq(QF+4*s)}, v4 offset:{QBF+64*s}")
        e("s_waitcnt lgkmcnt(0)")
        for s in range(2):
            for tl in range(2):
                cc = "0" if s == 0 else vq(QACC + 4 * tl)
                e(f"v_mfma_f32_16x16x32_bf16 {vq(QACC+4*tl)}, {vq(WUKF+(tl*2+s)*4)}, {vq(QF+4*s)}, {cc}")
        self.nop(8)
        self.bfp_pack([QACC + k for k in range(8)], QACC + 8, 3, 4)
        e("s_mov_b32 exec_lo, 0x000f000f")
        e("s_mov_b32 exec_hi, 0x000f000f")
        self.vmem(f"buffer_store_dwordx4 {vq(QACC+8)}, v5, {srd(WS)}, s{sA} offen sc1", "pub2")
        e("s_mov_b64 exec, -1")
        self.stamp(4)
        c("H2 base sD = bq*32768 + (16hg+4v)*1024 ; second part +131072 -> sC")
        e(f"s_lshl_b32 s{sD}, s{sBQ}, 15")
        e(f"s_lshl_b32 s{sA}, s{sHG}, 14")
        e(f"s_add_u32 s{sD}, s{sD}, s{sA}")
        e(f"s_lshl_b32 s{sA}, s{sWAVE}, 12")
        e(f"s_add_u32 s{sD}, s{sD}, s{sA}")
        e(f"s_add_u32 s{sC}, s{sD}, 131072")
        self.p2_addrs()
        if o.d2: e(f"s_sleep {o.d2}")
        H2R = WOR
        h2loads = []
        for hh in range(4):
            for p in range(2):
                h2loads.append([f"buffer_load_dwordx4 {vq(H2R+(hh*2+p)*4)}, v{vL16}, {srd(WS)}, s{[sD, sC][p]} offen offset:{1024*hh} sc1"])
        self.issue(h2loads, "h2")
        self.stamp(5)
        self.gather(h2loads, [H2R + 4 * k for k in range(8)], 3, "h2", bfp=8)
        self.stamp(7)
        c("QC write addr v4 = 4v*ROW + (l>>2)*64 + (l&3)*8 ; imm hh*ROW (+32)")
        e(f"s_mul_i32 s{sA}, s{sWAVE}, {4*ROW}")
        e("v_lshrrev_b32 v4, 2, v0")
        e("v_lshlrev_b32 v4, 6, v4")
        e("v_and_b32 v3, 3, v0")
        e("v_lshl_add_u32 v4, v3, 3, v4")
        e(f"v_add_u32 v4, s{sA}, v4")
        FA = H2R + 32; FB = H2R + 40
        for hh in range(4):
            self.bfp_unpack(H2R + hh * 8, FA, 10)
            self.bfp_unpack(H2R + hh * 8 + 4, FB, 11)
            for k in range(8):
                e(f"v_mul_f32 v{FA+k}, v{FA+k}, v10")
            for k in range(8):
                e(f"v_fmac_f32 v{FA+k}, v{FB+k}, v11")
            o4 = H2R + hh * 8
            for k in range(4):
                e(f"v_cvt_pk_bf16_f32 v{o4+k}, v{FA+2*k}, v{FA+2*k+1}")
            e(f"ds_write_b64 v4, {vq(o4,2)} offset:{QC+hh*ROW}")
            e(f"ds_write_b64 v4, {vq(o4+2,2)} offset:{QC+hh*ROW+32}")
        self.cnt_signal(2, 3)
        self.stamp(6)
        self.cnt_wait(7, 4, 3)
        self.prereads()
        self.cnt_wait(2, 4, 3)
        self.p2(loader=False)
        c("=========== after publish ===========")
        e("s_barrier")
        self.bulk2()
        c("H3 addrs: sD = H3 + (h*8+j)*CS3 + v*4096 ; stats v10 = (l&31)*16, sC = ST + (h*4+v)*512")
        e(f"s_lshl_b32 s{sD}, s{sH}, 3")
        e(f"s_add_u32 s{sD}, s{sD}, s{sJ}")
        e(f"s_mul_i32 s{sD}, s{sD}, {CS3}")
        e(f"s_lshl_b32 s{sA}, s{sWAVE}, 12")
        e(f"s_add_u32 s{sD}, s{sD}, s{sA}")
        e(f"s_add_u32 s{sD}, s{sD}, {H3_BASE}")
        e("v_and_b32 v10, 31, v0")
        e("v_lshlrev_b32 v10, 4, v10")
        e(f"s_lshl_b32 s{sC}, s{sH}, 2")
        e(f"s_add_u32 s{sC}, s{sC}, s{sWAVE}")
        e(f"s_lshl_b32 s{sC}, s{sC}, 9")
        e(f"s_add_u32 s{sC}, s{sC}, {ST_BASE}")
        self.tr_addr()
        if o.d3: e(f"s_sleep {o.d3}")
        D3 = PV1 + 16; ST3 = PV1 + 32; SC = PV1 + 36; A0 = PV1 + 40; FU = PV1 + 48
        h3loads = [[f"buffer_load_dwordx4 {vq(D3+4*t)}, v{vL16}, {srd(WS)}, s{sD} offen offset:{1024*t} sc1"] for t in range(4)]
        h3loads.append([f"buffer_load_dwordx4 {vq(ST3)}, v10, {srd(WS)}, s{sC} offen sc1"])
        self.issue(h3loads, "h3")
        self.stamp(10)
        self.wait_vm("bulk")
        self.stamp(11)
        e("s_barrier")
        self.wo_tr()
        self.gather(h3loads, [D3 + 4 * t for t in range(4)] + [ST3], 3, "h3", bfp=4)
        self.stamp(12)
        e(f"v_lshrrev_b32 v{ST3+2}, 20, v{ST3+2}")
        e(f"v_lshrrev_b32 v{ST3+3}, 20, v{ST3+3}")
        e(f"v_or_b32 v{ST3}, v{ST3}, v{ST3+2}")
        e(f"v_or_b32 v{ST3+1}, v{ST3+1}, v{ST3+3}")
        e(f"v_mov_b32 v5, v{ST3}")
        for rr in (1, 2, 4, 8):
            self.nop(2)
            e(f"v_max_f32 v5, v5, v5 row_ror:{rr}")
        self.cross_rows(5, 6, "v_max_f32", do32=False)
        e(f"v_sub_f32 v{ST3}, v{ST3}, v5")
        e(f"v_exp_f32 v{ST3}, v{ST3}")
        c("SCL write v6 = v*128 + (c&7)*16 + (c>>3)*4, c = l&31 ; read v7 = v*128 + (l>>3)*16")
        e("v_and_b32 v6, 7, v0")
        e(f"v_mul_f32 v5, v{ST3}, v{ST3+1}")
        e("v_lshlrev_b32 v6, 4, v6")
        e("v_bfe_u32 v7, v0, 3, 2")
        e("v_add_f32 v5, v5, v5 row_ror:1")
        e("v_lshl_add_u32 v6, v7, 2, v6")
        e(f"s_lshl_b32 s{sA}, s{sWAVE}, 7")
        e("v_add_f32 v5, v5, v5 row_ror:2")
        e(f"v_add_u32 v6, s{sA}, v6")
        e("v_lshrrev_b32 v7, 3, v0")
        e("v_add_f32 v5, v5, v5 row_ror:4")
        e("v_lshlrev_b32 v7, 4, v7")
        e(f"v_add_u32 v7, s{sA}, v7")
        e("v_add_f32 v5, v5, v5 row_ror:8")
        self.cross_rows(5, 4, "v_add_f32", do32=False)
        e("v_rcp_f32 v5, v5")
        self.nop(1)
        e(f"v_mul_f32 v5, v5, v{ST3}")
        e(f"ds_write_b32 v6, v5 offset:{SCL}")
        e("s_waitcnt lgkmcnt(0)")
        e(f"ds_read_b128 {vq(SC)}, v7 offset:{SCL}")
        c("CTXC write addr v6 = v*128 + (32*((l>>2)&1) + 4*(l&3) + idx(g))*2")
        e("v_bfe_u32 v6, v0, 2, 1")
        e("v_lshlrev_b32 v6, 6, v6")
        e("v_and_b32 v7, 3, v0")
        e("v_lshl_add_u32 v6, v7, 3, v6")
        e(f"v_and_b32 v7, 1, v{vG}")
        e("v_lshl_add_u32 v6, v7, 2, v6")
        e(f"v_lshrrev_b32 v7, 1, v{vG}")
        e("v_lshl_add_u32 v6, v7, 1, v6")
        e(f"v_add_u32 v6, s{sA}, v6")
        for t in range(4):
            self.bfp_unpack(D3 + 4 * t, FU, 5)
            if t == 0: e("s_waitcnt lgkmcnt(0)")
            e(f"v_mul_f32 v5, v5, v{SC+t}")
            for k in range(8):
                if t == 0: e(f"v_mul_f32 v{A0+k}, v{FU+k}, v5")
                else: e(f"v_fmac_f32 v{A0+k}, v{FU+k}, v5")
        self.nop(1)
        for k in range(4):
            e(f"v_permlane32_swap_b32 v{A0+2*k}, v{A0+2*k+1}")
        for k in range(4):
            e(f"v_add_f32 v{A0+2*k}, v{A0+2*k}, v{A0+2*k+1}")
        self.nop(1)
        e(f"v_permlane16_swap_b32 v{A0}, v{A0+2}")
        e(f"v_permlane16_swap_b32 v{A0+4}, v{A0+6}")
        e(f"v_add_f32 v{A0}, v{A0}, v{A0+2}")
        e(f"v_add_f32 v{A0+4}, v{A0+4}, v{A0+6}")
        self.nop(1)
        e(f"v_add_f32 v{A0}, v{A0}, v{A0} row_ror:8")
        e(f"v_add_f32 v{A0+4}, v{A0+4}, v{A0+4} row_ror:8")
        e(f"v_cvt_pk_bf16_f32 v{A0}, v{A0}, v{A0+4}")
        e(f"ds_write_b16 v6, v{A0} offset:{CTXC}")
        e(f"ds_write_b16_d16_hi v6, v{A0} offset:{CTXC+32}")
        self.p3_addrs()
        e("s_waitcnt lgkmcnt(0)")
        e("s_barrier")
        self.ffn2()
        e("s_barrier")
        self.p3_tail(loader=False)

    def loader(self):
        o = self.o
        e, c, lab = self.e, self.c, self.lab
        nt = self.nt
        e("v_lshlrev_b32 v3, 2, v0")
        e(f"ds_write_b32 v3, v{vZ} offset:{HBUF}")
        e("s_mov_b64 exec, 0xffff")
        e(f"ds_write_b32 v3, v{vZ} offset:{CNT}")
        e("s_mov_b64 exec, -1")
        e(f"s_mul_i32 s{sDM}, s{sU}, {32*ROW}")
        e(f"s_add_u32 s{sDM}, s{sDM}, {TILE}")
        e(f"s_lshl_b32 s{sDS}, s{sQ}, 17")
        e(f"s_lshl_b32 s{sA}, s{sU}, 15")
        e(f"s_add_u32 s{sDS}, s{sDS}, s{sA}")
        e("s_waitcnt lgkmcnt(0)")
        self.stamp(0)
        def dma(n):
            for k in range(n):
                e(f"s_mov_b32 m0, s{sDM}")
                e(f"s_add_u32 s{sDM}, s{sDM}, {ROW}")
                self.vmem(f"buffer_load_dwordx4 v{vL16}, {srd(CKV)}, s{sDS} offen{nt} lds", "dma")
                e(f"s_add_u32 s{sDS}, s{sDS}, 1024")
                if o.thr and k >= o.thr - 1 and k < n - 1: e(f"s_waitcnt vmcnt({o.thr-1})")
        XR = PV1; U = PV1 + 8
        e(f"s_lshl_b32 s{sA}, s{sU}, 10")
        self.vmem(f"buffer_load_dwordx4 {vq(XR)}, v{vL16}, {srd(X)}, s{sA} offen", "x")
        e(f"v_add_u32 v3, s{sA}, v{vL16}")
        e("s_barrier")
        self.wait_vm("x")
        self.layernorm_row(XR, U)
        e(f"ds_write_b128 v3, {vq(XR)} offset:{XNB}")
        self.cnt_signal(4, 3)
        Ln = self.newlabel("L_noncedone"); Lp = self.newlabel("L_noncepoll"); Lok = self.newlabel("L_nonceok")
        e(f"s_cmp_lg_u32 s{sWAVE}, 7")
        e(f"s_cbranch_scc1 {Ln}")
        if o.dn: e(f"s_sleep {o.dn}")
        e(f"s_load_dwordx2 s[{sE}:{sF}], s[{DBG}:{DBG+1}], 0")
        e("s_waitcnt lgkmcnt(0)")
        e(f"v_mov_b32 v10, s{sE}")
        e(f"v_mov_b32 v11, s{sF}")
        self.nop(1)
        lab(Lp)
        e(f"v_readfirstlane_b32 s{sA}, v11")
        e(f"s_bitcmp1_b32 s{sA}, 31")
        e(f"s_cbranch_scc1 {Lok}")
        e(f"s_add_u32 s{sSPIN}, s{sSPIN}, 0x10000")
        e(f"s_cmp_gt_u32 s{sSPIN}, 0x40000000")
        e(f"s_cbranch_scc1 {Lok}")
        e(f"buffer_load_dwordx2 v[10:11], v{vZ}, {srd(DBG)}, 0 offen sc1")
        e("s_waitcnt vmcnt(0)")
        e(f"s_branch {Lp}")
        lab(Lok)
        e(f"ds_write_b64 v{vZ}, v[10:11] offset:{NONCE}")
        self.cnt_signal(5+3, 3)
        lab(Ln)
        self.p2_addrs()
        if o.gate >= 0: self.cnt_wait(6, 4, 3)
        self.stamp(1)
        dma(32)
        self.stamp(2)
        c("early w_o rows (16j + 16u + k) & 127 -> regs")
        e(f"s_add_u32 s{sA}, s{sJ}, s{sU}")
        e(f"s_and_b32 s{sA}, s{sA}, 7")
        e(f"s_lshl_b32 s{sA}, s{sA}, 4")
        e(f"s_mul_i32 s{sSEL}, s{sA}, {ROW}")
        e(f"s_lshl_b32 s{sB}, s{sH}, 7")
        e(f"s_add_u32 s{sA}, s{sA}, s{sB}")
        e(f"s_lshl_b32 s{sA}, s{sA}, 10")
        for k in range(16):
            if o.thr: e(f"s_waitcnt vmcnt({o.thr-1})")
            self.vmem(f"buffer_load_dwordx4 {vq(WOR+4*k)}, v{vL16}, {srd(WO)}, s{sA} offen offset:{1024*(k&3)}{nt}", "woe")
            if k & 3 == 3 and k < 15: e(f"s_add_u32 s{sA}, s{sA}, 4096")
            if k == o.sig_at:
                self.wait_vm("dma"); self.stamp(4); self.cnt_signal(7, 3)
        c("w_uv dword loads: rows 64j + 32s + 8g + jj, cols 32u + 2r ; voff v3 = g*65536 + r*4")
        WUVR = ACC
        e(f"v_lshlrev_b32 v3, 16, v{vG}")
        e(f"v_lshl_add_u32 v3, v{vR}, 2, v3")
        e(f"s_lshl_b32 s{sA}, s{sJ}, 19")
        e(f"s_lshl_b32 s{sB}, s{sH}, 8")
        e(f"s_add_u32 s{sA}, s{sA}, s{sB}")
        e(f"s_lshl_b32 s{sB}, s{sU}, 6")
        e(f"s_add_u32 s{sA}, s{sA}, s{sB}")
        for s in range(2):
            for jj in range(8):
                self.vmem(f"buffer_load_dword v{WUVR+s*8+jj}, v3, {srd(WUV)}, s{sA} offen{nt}", "wuv")
                if not (s == 1 and jj == 7):
                    e(f"s_add_u32 s{sA}, s{sA}, {8192 if jj < 7 else 8192*25}")
        self.stamp(3)
        self.cnt_wait(7, 4, 3)
        self.prereads()
        self.stamp(5)
        self.cnt_wait(2, 4, 3)
        e(f"ds_read_b64 v[10:11], v{vZ} offset:{NONCE}")
        e("s_waitcnt lgkmcnt(0)")
        self.decode_tags()
        self.stamp(6)
        self.p2(loader=True)
        e("s_barrier")
        vB1 = 11
        e("v_lshrrev_b32 v4, 2, v0")
        e("v_and_b32 v4, 7, v4")
        e("v_lshlrev_b32 v4, 1, v4")
        e(f"s_lshl_b32 s{sC}, s{sF0}, 1")
        self.vmem(f"buffer_load_ushort v{vB1}, v4, {srd(B1)}, s{sC} offen", "wuv")
        self.bulk2()
        e(f"s_add_u32 s{sSEL}, s{sSEL}, {TILE}")
        e(f"v_add_u32 v3, s{sSEL}, v{vL16}")
        self.wait_vm("woe")
        for k in range(16):
            e(f"ds_write_b128 v3, {vq(WOR+4*k)} offset:{ROW*k}")
        self.tr_addr()
        XF = PV1 + 48; W1F = vM; FACC = vM + 16; T = vM + 20
        self.xn_addr(4)
        for s in range(4):
            e(f"ds_read_b128 {vq(XF+4*s)}, v4 offset:{XNB+64*s}")
        c("w1 tr addr v10 = W1L + (128u + 8g + rho)*16 + (kappa&1)*8")
        e(f"v_lshrrev_b32 v10, 2, v{vR}")
        e(f"v_lshl_add_u32 v10, v{vG}, 3, v10")
        e("v_lshlrev_b32 v10, 4, v10")
        e(f"v_and_b32 v4, 1, v{vR}")
        e("v_lshl_add_u32 v10, v4, 3, v10")
        e(f"s_lshl_b32 s{sA}, s{sU}, 11")
        e(f"v_add_u32 v10, s{sA}, v10")
        self.stamp(10)
        WUVF = PV1 + 16
        self.wait_vm("wuv")
        for s in range(2):
            for i in range(2):
                for t in range(4):
                    e(f"v_perm_b32 v{WUVF+(s*2+i)*4+t}, v{WUVR+s*8+2*t+1}, v{WUVR+s*8+2*t}, s{sPHI if i else sPLO}")
        self.wait_vm("bulk", " lgkmcnt(0)")
        self.stamp(11)
        e("s_barrier")
        c("FFN1 (loaders)")
        for s in range(4):
            for hf in range(2):
                e(f"ds_read_b64_tr_b16 {vq(W1F+4*s+2*hf,2)}, v10 offset:{W1L+(32*s+4*hf)*16}")
        e(f"s_lshl_b32 s{sA}, s{sU}, 8")
        e(f"v_lshlrev_b32 v4, 4, v{vR}")
        e(f"v_add_u32 v4, s{sA}, v4")
        e("s_waitcnt lgkmcnt(0)")
        for s in range(4):
            cc = "0" if s == 0 else vq(FACC)
            e(f"v_mfma_f32_16x16x32_bf16 {vq(FACC)}, {vq(XF+4*s)}, {vq(W1F+4*s)}, {cc}")
        e("s_mov_b64 exec, 0xffff")
        self.nop(8)
        e(f"ds_write_b128 v4, {vq(FACC)} offset:{RED2}")
        e("s_mov_b64 exec, -1")
        self.cnt_signal(3, 3)
        self.wo_tr()
        Lh = self.newlabel("L_hdone")
        e(f"s_cmp_lg_u32 s{sU}, 0")
        e(f"s_cbranch_scc1 {Lh}")
        self.cnt_wait(3, 4, 3)
        e("v_lshlrev_b32 v4, 2, v0")
        for k in range(4):
            e(f"ds_read_b32 v{T+k}, v4 offset:{RED2+256*k}")
        e("v_and_b32 v5, 3, v0")
        e("v_lshlrev_b32 v5, 6, v5")
        e("v_lshrrev_b32 v4, 2, v0")
        e("v_lshl_add_u32 v5, v4, 1, v5")
        e(f"v_lshlrev_b32 v{vB1}, 16, v{vB1}")
        e("s_waitcnt lgkmcnt(0)")
        e(f"v_add_f32 v{T}, v{T}, v{T+1}")
        e(f"v_add_f32 v{T+2}, v{T+2}, v{T+3}")
        e(f"v_add_f32 v{T}, v{T}, v{T+2}")
        e(f"v_cvt_pk_bf16_f32 v{T}, v{T}, v{T}")
        e(f"v_lshlrev_b32 v{T}, 16, v{T}")
        e(f"v_add_f32 v{T}, v{T}, v{vB1}")
        e(f"v_cvt_pk_bf16_f32 v{T}, v{T}, v{T}")
        e(f"v_lshlrev_b32 v{T}, 16, v{T}")
        e(f"v_max_f32 v{T}, 0, v{T}")
        e(f"v_mul_f32 v{T}, v{T}, v{T}")
        e(f"v_cvt_pk_bf16_f32 v{T}, v{T}, v{T}")
        e(f"s_cmp_lt_u32 s{sF0}, 1792")
        e("s_cselect_b32 exec_lo, -1, 0")
        e("s_mov_b32 exec_hi, 0")
        e(f"ds_write_b16 v5, v{T} offset:{HBUF}")
        e("s_mov_b64 exec, -1")
        self.cnt_signal(5, 3)
        lab(Lh)
        self.cnt_wait(5, 1, 3)
        self.ffn2()
        self.p3_addrs()
        e(f"v_and_b32 v4, 3, v{vR}")
        e("v_lshlrev_b32 v3, 7, v4")
        e(f"v_lshl_add_u32 v3, v{vG}, 4, v3")
        e(f"s_lshl_b32 s{sB}, s{sU}, 6")
        e(f"v_add_u32 v4, s{sB}, v7")
        e("s_barrier")
        CF = PV1 + 32; CA = PV1 + 40
        for s in range(2):
            e(f"ds_read_b128 {vq(CF+4*s)}, v3 offset:{CTXC+64*s}")
        e("s_waitcnt lgkmcnt(0)")
        for s in range(2):
            for i in range(2):
                cc = "0" if s == 0 else vq(CA + 4 * i)
                e(f"v_mfma_f32_16x16x32_bf16 {vq(CA+4*i)}, {vq(WUVF+(s*2+i)*4)}, {vq(CF+4*s)}, {cc}")
        self.nop(8)
        for k in range(4):
            e(f"v_cvt_pk_bf16_f32 v{CF+k}, v{CA+k}, v{CA+4+k}")
        e(f"ds_write_b128 v4, {vq(CF)} offset:{CTX}")
        e("s_waitcnt lgkmcnt(0)")
        e("s_barrier")
        self.p3_tail(loader=True)

    def decode_tags(self):
        e = self.e
        e(f"v_readfirstlane_b32 s{sE}, v10")
        e(f"v_readfirstlane_b32 s{sF}, v11")
        self.nop(1)
        e(f"s_and_b32 s{sT[0]}, s{sE}, 0xfff")
        e(f"s_bfe_u32 s{sT[1]}, s{sE}, 0xc000c")
        e(f"s_lshr_b64 s[{sE}:{sF}], s[{sE}:{sF}], 24")
        e(f"s_and_b32 s{sT[2]}, s{sE}, 0xfff")
        e(f"s_bfe_u32 s{sT[3]}, s{sE}, 0xc000c")
        for k in range(4):
            e(f"v_mov_b32 v{vT[k]}, s{sT[k]}")
        e(f"v_readfirstlane_b32 s{sBT[3]}, v10")
        e(f"s_lshr_b32 s{sE}, s{sE}, 8")
        e(f"s_lshl_b32 s{sBT[0]}, s{sE}, 30")
        e(f"s_lshr_b32 s{sE}, s{sE}, 2")
        e(f"s_lshl_b32 s{sBT[1]}, s{sE}, 30")
        e(f"s_lshr_b32 s{sE}, s{sE}, 2")
        e(f"s_lshl_b32 s{sBT[2]}, s{sE}, 28")
        for k in range(4):
            e(f"v_mov_b32 v{vBT[k]}, s{sBT[k]}")
    def bfp_pack(self, V, D, t0, t1):
        e = self.e
        e(f"v_max3_f32 v{t0}, |v{V[0]}|, |v{V[1]}|, |v{V[2]}|")
        e(f"v_max3_f32 v{t1}, |v{V[3]}|, |v{V[4]}|, |v{V[5]}|")
        e(f"v_max3_f32 v{t0}, |v{V[6]}|, |v{V[7]}|, v{t0}")
        e(f"v_max_f32 v{t0}, v{t0}, v{t1}")
        e(f"v_and_b32 v{t0}, 0x7f800000, v{t0}")
        e(f"v_max_u32 v{t0}, 0x08000000, v{t0}")
        e(f"v_sub_u32 v{t1}, 0x82ff8000, v{t0}")
        for k in range(8):
            e(f"v_fma_f32 v{V[k]}, v{V[k]}, v{t1}, s{sMAG}")
        e(f"v_lshrrev_b32 v{t0}, 3, v{t0}")
        for k in (1, 4, 7): e(f"v_lshlrev_b32 v{V[k]}, 10, v{V[k]}")
        for k in (2, 5): e(f"v_lshlrev_b32 v{V[k]}, 20, v{V[k]}")
        e(f"v_or_b32 v{t0}, v{t0}, v{vBT[2]}")
        e(f"v_bfi_b32 v{V[0]}, s{sM0}, v{V[0]}, v{vBT[0]}")
        e(f"v_bfi_b32 v{V[3]}, s{sM0}, v{V[3]}, v{vBT[1]}")
        e(f"v_bfi_b32 v{V[6]}, s{sM0}, v{V[6]}, v{t0}")
        e(f"v_bfi_b32 v{V[0]}, s{sM1}, v{V[1]}, v{V[0]}")
        e(f"v_bfi_b32 v{V[3]}, s{sM1}, v{V[4]}, v{V[3]}")
        e(f"v_bfi_b32 v{D+2}, s{sM1}, v{V[7]}, v{V[6]}")
        e(f"v_bfi_b32 v{D}, s{sM2}, v{V[2]}, v{V[0]}")
        e(f"v_bfi_b32 v{D+1}, s{sM2}, v{V[5]}, v{V[3]}")
        e(f"v_mov_b32 v{D+3}, v{vBT[3]}")
    def check_bfp(self, q, vacc, t):
        e = self.e
        e(f"v_xor_b32 v{vacc}, s{sBT[0]}, v{q}")
        e(f"v_xor_b32 v{t}, s{sBT[1]}, v{q+1}")
        e(f"v_or_b32 v{vacc}, v{vacc}, v{t}")
        e(f"v_xor_b32 v{t}, s{sBT[2]}, v{q+2}")
        e(f"v_lshrrev_b32 v{vacc}, 30, v{vacc}")
        e(f"v_lshrrev_b32 v{t}, 28, v{t}")
        e(f"v_xor_b32 v{q+3}, s{sBT[3]}, v{q+3}")
        e(f"v_or3_b32 v{vacc}, v{vacc}, v{t}, v{q+3}")
        e(f"v_cmp_ne_u32 vcc, 0, v{vacc}")
    def bfp_unpack(self, q, F, sc):
        e = self.e
        e(f"v_lshlrev_b32 v{sc}, 3, v{q+2}")
        for k in range(8):
            e(f"v_bfe_i32 v{F+k}, v{q+k//3}, {10*(k%3)}, 10")
        e(f"v_and_b32 v{sc}, 0x7f800000, v{sc}")
        for k in range(8):
            e(f"v_cvt_f32_i32 v{F+k}, v{F+k}")
        e(f"v_add_u32 v{sc}, 0xfc004020, v{sc}")
    def p2_addrs(self):
        e = self.e
        self.c("tr base v6 = TILE + (4g+rho)*ROW + 128w + 8kappa ; v7 = v6 + 64*ROW ; QK A addr v5 = TILE + (16w+r)*ROW + 16g")
        e(f"v_lshrrev_b32 v6, 2, v{vR}")
        e(f"v_lshl_add_u32 v6, v{vG}, 2, v6")
        e(f"v_mul_u32_u24 v6, {ROW}, v6")
        e(f"v_and_b32 v7, 3, v{vR}")
        e("v_lshl_add_u32 v6, v7, 3, v6")
        e(f"s_lshl_b32 s{sA}, s{sWAVE}, 7")
        e(f"s_add_u32 s{sA}, s{sA}, {TILE}")
        e(f"v_add_u32 v6, s{sA}, v6")
        e(f"v_add_u32 v7, {64*ROW}, v6")
        e(f"s_lshl_b32 s{sA}, s{sWAVE}, 4")
        e(f"v_add_u32 v5, s{sA}, v{vR}")
        e(f"v_mul_u32_u24 v5, {ROW}, v5")
        e(f"v_lshl_add_u32 v5, v{vG}, 4, v5")
        e(f"v_add_u32 v5, {TILE}, v5")
    def prereads(self):
        e = self.e
        for s in range(16):
            e(f"ds_read_b128 {vq(QKA+4*s)}, v5 offset:{64*s}")
        for t in range(4):
            for i in range(4):
                for hf in range(2):
                    base = 6 if t < 2 else 7
                    off = ((32 * (t & 1)) + 16 * hf) * ROW + 32 * i
                    e(f"ds_read_b64_tr_b16 {vq(PV1+(i*4+t)*4+2*hf,2)}, v{base} offset:{off}")
        e("s_waitcnt lgkmcnt(0)")
    def tr_addr(self):
        e = self.e
        self.c("tr base (natural k map) v6 = TILE + (8g+rho)*ROW + 128w + 8kappa ; v7 = v6 + 64*ROW ; w2: v5 = W2L + rho*ROW + 128w + 8kappa")
        e(f"v_lshrrev_b32 v5, 2, v{vR}")
        e(f"v_lshl_add_u32 v6, v{vG}, 3, v5")
        e(f"v_mul_u32_u24 v6, {ROW}, v6")
        e(f"v_mul_u32_u24 v5, {ROW}, v5")
        e(f"v_and_b32 v7, 3, v{vR}")
        e("v_lshlrev_b32 v7, 3, v7")
        e(f"s_lshl_b32 s{sA}, s{sWAVE}, 7")
        e(f"v_add_u32 v7, s{sA}, v7")
        e("v_add_u32 v5, v5, v7")
        e("v_add_u32 v6, v6, v7")
        e(f"v_add_u32 v6, {TILE}, v6")
        e(f"v_add_u32 v7, {64*ROW}, v6")
    def wo_dma(self, first, n, tag):
        e = self.e
        for k in range(n):
            e(f"s_mov_b32 m0, s{sDM}")
            e(f"s_add_u32 s{sDM}, s{sDM}, {ROW}")
            self.vmem(f"buffer_load_dwordx4 v{vL16}, {srd(WO)}, s{sDS} offen{self.nt} lds", tag)
            e(f"s_add_u32 s{sDS}, s{sDS}, 1024")
            if first and self.o.thr2 and k >= self.o.thr2 - 1 and k < n - 1: e(f"s_waitcnt vmcnt({self.o.thr2-1})")
    def wo_setup(self, row0_sreg):
        e = self.e
        e(f"s_mul_i32 s{sDM}, s{row0_sreg}, {ROW}")
        e(f"s_add_u32 s{sDM}, s{sDM}, {TILE}")
        e(f"s_lshl_b32 s{sDS}, s{sH}, 7")
        e(f"s_add_u32 s{sDS}, s{sDS}, s{row0_sreg}")
        e(f"s_lshl_b32 s{sDS}, s{sDS}, 10")
    def ffn_dma(self):
        e = self.e
        self.c("w1 image: rows 64w + lane, 16 B at col f0 ; w2 row f0 + w")
        e("v_mul_u32_u24 v3, 3584, v0")
        e(f"s_mul_i32 s{sA}, s{sWAVE}, {64*3584}")
        e(f"s_lshl_b32 s{sB}, s{sF0}, 1")
        e(f"s_add_u32 s{sA}, s{sA}, s{sB}")
        e(f"s_lshl_b32 s{sB}, s{sWAVE}, 10")
        e(f"s_add_u32 s{sB}, s{sB}, {W1L}")
        e(f"s_mov_b32 m0, s{sB}")
        e(f"s_add_u32 s{sB}, s{sF0}, s{sWAVE}")
        self.vmem(f"buffer_load_dwordx4 v3, {srd(W1)}, s{sA} offen{self.nt} lds", "bulk")
        e(f"s_lshl_b32 s{sB}, s{sB}, 10")
        e(f"s_mul_i32 s{sA}, s{sWAVE}, {ROW}")
        if W2L: e(f"s_add_u32 s{sA}, s{sA}, {W2L}")
        e(f"s_mov_b32 m0, s{sA}")
        e(f"s_nop 0")
        self.vmem(f"buffer_load_dwordx4 v{vL16}, {srd(W2)}, s{sB} offen{self.nt} lds", "bulk")
    def bulk2(self):
        e = self.e
        o = self.o
        e(f"s_lshl_b32 s{sA}, s{sJ}, 4")
        e(f"s_lshl_b32 s{sB}, s{sWAVE}, 3")
        e(f"s_add_u32 s{sA}, s{sA}, s{sB}")
        e(f"s_add_u32 s{sA}, s{sA}, 64")
        e(f"s_and_b32 s{sA}, s{sA}, 127")
        self.wo_setup(sA)
        self.wo_dma(1, 8, "bulk")
    W2F = PV1
    def wo_tr(self):
        e = self.e
        for i in range(4):
            for hf in range(2):
                e(f"ds_read_b64_tr_b16 {vq(self.W2F+4*i+2*hf,2)}, v5 offset:{W2L+4*hf*ROW+32*i}")
        for s in range(4):
            for i in range(4):
                for hf in range(2):
                    base = 6 if s < 2 else 7
                    off = ((32 * (s & 1)) + 4 * hf) * ROW + 32 * i
                    e(f"ds_read_b64_tr_b16 {vq(QKA+(i*4+s)*4+2*hf,2)}, v{base} offset:{off}")
    def ffn2(self):
        e = self.e
        HF = vM + 24
        e(f"v_and_b32 v3, 3, v{vR}")
        e("v_lshlrev_b32 v3, 6, v3")
        e(f"v_lshl_add_u32 v3, v{vG}, 4, v3")
        e(f"ds_read_b128 {vq(HF)}, v3 offset:{HBUF}")
        e("s_waitcnt lgkmcnt(0)")
        for i in range(4):
            e(f"v_mfma_f32_16x16x32_bf16 {vq(ACC+4*i)}, {vq(self.W2F+4*i)}, {vq(HF)}, 0")
    def p2(self, loader):
        o = self.o
        e, c, lab = self.e, self.c, self.lab
        S = vM; BW = vM + 4
        c("=========== QK ===========  qc addr v10 = r*ROW + 16g")
        e(f"v_mul_u32_u24 v10, {ROW}, v{vR}")
        e(f"v_lshl_add_u32 v10, v{vG}, 4, v10")
        for s in range(5):
            e(f"ds_read_b128 {vq(BW+4*s)}, v10 offset:{QC+64*s}")
        c("MX write addr v11 = r*32 + w*4 ; read v4 = r*32 ; LS addr v3")
        e(f"v_lshlrev_b32 v4, 5, v{vR}")
        e(f"s_lshl_b32 s{sA}, s{sWAVE}, 2")
        e(f"v_add_u32 v11, s{sA}, v4")
        for s in range(16):
            e(f"s_waitcnt lgkmcnt({min(4, 15-s)})")
            cc = "0" if s == 0 else vq(S)
            e(f"v_mfma_f32_16x16x32_bf16 {vq(S)}, {vq(QKA+4*s)}, {vq(BW+4*(s%5))}, {cc}")
            if s + 5 < 16:
                e(f"ds_read_b128 {vq(BW+4*(s%5))}, v10 offset:{QC+64*(s+5)}")
        c("PBUF write addr v10 = (w>>1)*1024 + lane*16 + (w&1)*8")
        e(f"s_lshr_b32 s{sA}, s{sWAVE}, 1")
        e(f"s_lshl_b32 s{sA}, s{sA}, 10")
        e(f"s_and_b32 s{sB}, s{sWAVE}, 1")
        e(f"s_lshl_b32 s{sB}, s{sB}, 3")
        e(f"s_add_u32 s{sA}, s{sA}, s{sB}")
        e(f"v_add_u32 v10, s{sA}, v{vL16}")
        self.nop(2)
        e(f"v_max3_f32 v5, v{S}, v{S+1}, v{S+2}")
        e(f"v_max_f32 v5, v5, v{S+3}")
        self.cross_rows(5, 3, "v_max_f32")
        e(f"ds_write_b32 v11, v5 offset:{MX}")
        e("s_waitcnt lgkmcnt(0)")
        self.stamp(8)
        e("s_barrier")
        MXR = vM + 8
        e(f"ds_read_b128 {vq(MXR)}, v4 offset:{MX}")
        e(f"ds_read_b128 {vq(MXR+4)}, v4 offset:{MX+16}")
        self.stamp(20)
        self.ffn_dma()
        self.stamp(21)
        e("s_waitcnt lgkmcnt(0)")
        e(f"v_max3_f32 v5, v{MXR}, v{MXR+1}, v{MXR+2}")
        e(f"v_max3_f32 v3, v{MXR+3}, v{MXR+4}, v{MXR+5}")
        e(f"v_max3_f32 v5, v5, v{MXR+6}, v{MXR+7}")
        e("v_max_f32 v5, v5, v3")
        e(f"v_mul_f32 v5, s{sCS}, v5")
        for k in range(4):
            e(f"v_fma_f32 v{S+k}, v{S+k}, s{sCS}, -v5")
        for k in range(4):
            e(f"v_exp_f32 v{S+k}, v{S+k}")
        self.nop(1)
        e(f"v_pk_add_f32 {vq(MXR,2)}, {vq(S,2)}, {vq(S+2,2)}")
        e(f"v_cvt_pk_bf16_f32 v{S}, v{S}, v{S+1}")
        e(f"v_cvt_pk_bf16_f32 v{S+1}, v{S+2}, v{S+3}")
        e(f"ds_write_b64 v10, {vq(S,2)} offset:{PBUF}")
        e(f"v_add_f32 v{MXR}, v{MXR}, v{MXR+1}")
        self.cross_rows(MXR, MXR + 1, "v_add_f32")
        e(f"ds_write_b32 v11, v{MXR} offset:{LS}")
        c("H3 publish: voff v4 = (r&7)*HS3 + (r>>3)*64 + 16g ; sA = H3 + hg*16*HS3 + w*CS3 + bq*4096 + chunk*128 ; +8*HS3 -> sC")
        e(f"v_and_b32 v4, 7, v{vR}")
        e(f"v_mul_u32_u24 v4, {HS3}, v4")
        e(f"v_lshl_add_u32 v4, v{vG}, 4, v4")
        e(f"v_lshrrev_b32 v3, 3, v{vR}")
        e("v_lshl_add_u32 v4, v3, 6, v4")
        e("s_mov_b32 vcc_lo, 0xff00ff00")
        e("s_mov_b32 vcc_hi, 0xff00ff00")
        e(f"s_mul_i32 s{sA}, s{sHG}, {16*HS3}")
        e(f"s_mul_i32 s{sB}, s{sWAVE}, {CS3}")
        e(f"s_add_u32 s{sA}, s{sA}, s{sB}")
        e(f"s_lshl_b32 s{sB}, s{sBQ}, 12")
        e(f"s_add_u32 s{sA}, s{sA}, s{sB}")
        e(f"s_lshl_b32 s{sB}, s{sCHUNK}, 7")
        e(f"s_add_u32 s{sA}, s{sA}, s{sB}")
        e(f"s_add_u32 s{sA}, s{sA}, {H3_BASE}")
        e(f"s_add_u32 s{sC}, s{sA}, {8*HS3}")
        e("s_waitcnt lgkmcnt(0)")
        self.stamp(17)
        e("s_barrier")
        self.stamp(18)
        PF = vM; PACC = QKA
        for t in range(4):
            e(f"ds_read_b128 {vq(PF+4*t)}, v{vL16} offset:{PBUF+1024*t}")
        for t in range(4):
            e(f"s_waitcnt lgkmcnt({3-t})")
            for i in range(4):
                cc = "0" if t == 0 else vq(PACC + 4 * i)
                e(f"v_mfma_f32_16x16x32_bf16 {vq(PACC+4*i)}, {vq(PV1+(i*4+t)*4)}, {vq(PF+4*t)}, {cc}")
        self.nop(6)
        self.stamp(19)
        GA = PF; GB = PF + 4; GX = PF + 8; GY = PF + 12
        self.bfp_pack([PACC + k for k in range(8)], GA, 6, 7)
        self.bfp_pack([PACC + 8 + k for k in range(8)], GB, 6, 7)
        c("exchange B_r (lane r<8) <-> A_{r+8} (lane r+8): X = lane<8 ? B : A ; Y = ror8(X) ; S1 = lane<8 ? A : Y ; S2 = lane<8 ? Y : B")
        for k in range(3):
            e(f"v_cndmask_b32 v{GX+k}, v{GB+k}, v{GA+k}, vcc")
        self.nop(1)
        for k in range(3):
            e(f"v_mov_b32 v{GY+k}, v{GX+k} row_ror:8")
        for k in range(3):
            e(f"v_cndmask_b32 v{GA+k}, v{GA+k}, v{GY+k}, vcc")
        self.vmem(f"buffer_store_dwordx4 {vq(GA)}, v4, {srd(WS)}, s{sA} offen sc1", "pub3")
        for k in range(3):
            e(f"v_cndmask_b32 v{GB+k}, v{GY+k}, v{GB+k}, vcc")
        self.vmem(f"buffer_store_dwordx4 {vq(GB)}, v4, {srd(WS)}, s{sC} offen sc1", "pub3")
        if loader:
            Ls = self.newlabel("L_statdone")
            e(f"s_cmp_lg_u32 s{sWAVE}, 7")
            e(f"s_cbranch_scc1 {Ls}")
            ONES = PV1 + 56; LACC = PV1 + 48
            e(f"v_lshlrev_b32 v3, 5, v{vR}")
            e(f"ds_read_b128 {vq(LACC)}, v3 offset:{LS}")
            e(f"ds_read_b128 {vq(LACC+4)}, v3 offset:{LS+16}")
            e("s_waitcnt lgkmcnt(0)")
            e(f"v_pk_add_f32 {vq(LACC,2)}, {vq(LACC,2)}, {vq(LACC+2,2)}")
            e(f"v_pk_add_f32 {vq(LACC+4,2)}, {vq(LACC+4,2)}, {vq(LACC+6,2)}")
            e(f"v_pk_add_f32 {vq(LACC,2)}, {vq(LACC,2)}, {vq(LACC+4,2)}")
            e(f"v_add_f32 v{LACC}, v{LACC}, v{LACC+1}")
            c("addr voff = r*2048 ; soff = ST + hg*16*2048 + bq*512 + chunk*16")
            e(f"v_lshlrev_b32 v3, 11, v{vR}")
            e(f"s_lshl_b32 s{sA}, s{sHG}, 15")
            e(f"s_lshl_b32 s{sB}, s{sBQ}, 9")
            e(f"s_add_u32 s{sA}, s{sA}, s{sB}")
            e(f"s_lshl_b32 s{sB}, s{sCHUNK}, 4")
            e(f"s_add_u32 s{sA}, s{sA}, s{sB}")
            e(f"s_add_u32 s{sA}, s{sA}, {ST_BASE}")
            e(f"v_bfi_b32 v{ONES}, s{sMASK}, v5, v{vT[0]}")
            e(f"v_bfi_b32 v{ONES+1}, s{sMASK}, v{LACC}, v{vT[1]}")
            e(f"v_lshl_or_b32 v{ONES+2}, v5, 20, v{vT[2]}")
            e(f"v_lshl_or_b32 v{ONES+3}, v{LACC}, 20, v{vT[3]}")
            e("s_mov_b64 exec, 0xffff")
            e(f"buffer_store_dwordx4 {vq(ONES)}, v3, {srd(WS)}, s{sA} offen sc1")
            e("s_mov_b64 exec, -1")
            self.nop(2)
            lab(Ls)
        self.stamp(9)
    def p3_addrs(self):
        e = self.e
        self.c("ctx read v7 = (r&3)*256 + 16g ; H5 publish v6 = (r&3)*2048 + (r>>2)*64 + 16g ; sA = H5 + wg*PS5 + w*256")
        e(f"v_and_b32 v6, 3, v{vR}")
        e("v_lshlrev_b32 v7, 8, v6")
        e(f"v_lshl_add_u32 v7, v{vG}, 4, v7")
        e("v_lshlrev_b32 v6, 11, v6")
        e(f"v_lshl_add_u32 v6, v{vG}, 4, v6")
        e(f"v_lshrrev_b32 v5, 2, v{vR}")
        e("v_lshl_add_u32 v6, v5, 6, v6")
        e(f"s_mul_i32 s{sA}, s2, {PS5}")
        e(f"s_lshl_b32 s{sB}, s{sWAVE}, 8")
        e(f"s_add_u32 s{sA}, s{sA}, s{sB}")
        e(f"s_add_u32 s{sA}, s{sA}, {H5_BASE}")
        e(f"v_cmp_eq_u32 s[{sSEL}:{sSEL+1}], 1, v5")
        e(f"v_cmp_eq_u32 s[{sE}:{sF}], 2, v5")
        e(f"v_cmp_eq_u32 s[{sDS}:{sDM}], 3, v5")
    def p3_tail(self, loader):
        o = self.o
        e, c, lab = self.e, self.c, self.lab
        XF = vM
        for s in range(4):
            e(f"ds_read_b128 {vq(XF+4*s)}, v7 offset:{CTX+64*s}")
        for s in range(4):
            e(f"s_waitcnt lgkmcnt({3-s})")
            for i in range(4):
                e(f"v_mfma_f32_16x16x32_bf16 {vq(ACC+4*i)}, {vq(QKA+(i*4+s)*4)}, {vq(XF+4*s)}, {vq(ACC+4*i)}")
        G = vM + 16
        self.nop(6)
        for k in range(4):
            e(f"v_cndmask_b32 v{G+k}, v{ACC+k}, v{ACC+4+k}, s[{sSEL}:{sSEL+1}]")
        for k in range(4):
            e(f"v_cndmask_b32 v{G+k}, v{G+k}, v{ACC+8+k}, s[{sE}:{sF}]")
        for k in range(4):
            e(f"v_cndmask_b32 v{G+k}, v{G+k}, v{ACC+12+k}, s[{sDS}:{sDM}]")
        for i in range(4):
            e(f"v_bfi_b32 v{G+i}, s{sMASK}, v{G+i}, v{vT[i]}")
        self.vmem(f"buffer_store_dwordx4 {vq(G)}, v6, {srd(WS)}, s{sA} offen sc1", "pub5")
        self.stamp(13)
        Lx = self.newlabel("L_exit")
        e("s_cmp_ge_u32 s2, 64")
        e(f"s_cbranch_scc1 {Lx}")
        e("v_lshrrev_b32 v10, 3, v0")
        e(f"v_mul_u32_u24 v10, {PS5}, v10")
        e("v_and_b32 v11, 7, v0")
        e("v_lshl_add_u32 v10, v11, 4, v10")
        e(f"s_mul_i32 s{sB}, s{sWAVE}, {32*PS5}")
        e(f"s_lshl_b32 s{sD}, s2, 7")
        e(f"s_add_u32 s{sB}, s{sB}, s{sD}")
        e(f"s_add_u32 s{sB}, s{sB}, {H5_BASE}")
        bases = [sB, sC, sDS, sDM]
        for t in range(1, 4): e(f"s_add_u32 s{bases[t]}, s{sB}, {t*8*PS5}")
        vXB = WOR
        if not loader:
            e("v_and_b32 v7, 31, v0")
            e("v_lshlrev_b32 v7, 1, v7")
            e(f"s_lshl_b32 s{sA}, s2, 6")
            e(f"s_and_b32 s{sD}, s{sA}, 1023")
            self.vmem(f"buffer_load_ushort v{vXB}, v7, {srd(X)}, s{sA} offen", "xb")
            self.vmem(f"buffer_load_ushort v{vXB+1}, v7, {srd(B2)}, s{sD} offen", "xb")
        if o.d5: e(f"s_sleep {o.d5}")
        G5 = QKA
        loads = [[f"buffer_load_dwordx4 {vq(G5+4*t)}, v10, {srd(WS)}, s{bases[t]} offen sc1"] for t in range(4)]
        self.issue(loads, "h5")
        self.gather(loads, [G5 + 4 * t for t in range(4)], 3, "h5")
        self.stamp(14)
        e(f"v_pk_add_f32 {vq(G5,2)}, {vq(G5,2)}, {vq(G5+4,2)}")
        e(f"v_pk_add_f32 {vq(G5+2,2)}, {vq(G5+2,2)}, {vq(G5+6,2)}")
        e(f"v_pk_add_f32 {vq(G5+8,2)}, {vq(G5+8,2)}, {vq(G5+12,2)}")
        e(f"v_pk_add_f32 {vq(G5+10,2)}, {vq(G5+10,2)}, {vq(G5+14,2)}")
        e(f"v_pk_add_f32 {vq(G5,2)}, {vq(G5,2)}, {vq(G5+8,2)}")
        e(f"v_pk_add_f32 {vq(G5+2,2)}, {vq(G5+2,2)}, {vq(G5+10,2)}")
        e("v_lshlrev_b32 v11, 4, v11")
        e(f"v_and_b32 v4, 1, v{vG}")
        e(f"v_permlane32_swap_b32 v{G5}, v{G5+1}")
        e(f"v_permlane32_swap_b32 v{G5+2}, v{G5+3}")
        e(f"v_add_f32 v{G5}, v{G5}, v{G5+1}")
        e(f"v_add_f32 v{G5+2}, v{G5+2}, v{G5+3}")
        e("v_lshl_add_u32 v11, v4, 3, v11")
        e(f"v_lshrrev_b32 v4, 1, v{vG}")
        e(f"v_permlane16_swap_b32 v{G5}, v{G5+2}")
        e(f"v_add_f32 v{G5}, v{G5}, v{G5+2}")
        e("v_lshl_add_u32 v11, v4, 2, v11")
        e(f"s_lshl_b32 s{sC}, s{sWAVE}, 7")
        e(f"v_add_f32 v{G5}, v{G5}, v{G5} row_ror:8")
        e(f"v_add_u32 v11, s{sC}, v11")
        e(f"ds_write_b32 v11, v{G5} offset:{FIN}")
        e("s_waitcnt lgkmcnt(0)")
        e("s_barrier")
        if not loader:
            Lf = self.newlabel("L_fin")
            e(f"s_cmp_lg_u32 s{sWAVE}, 0")
            e(f"s_cbranch_scc1 {Lf}")
            e("v_lshlrev_b32 v11, 1, v7")
            for k in range(8):
                e(f"ds_read_b32 v{G5+k}, v11 offset:{FIN+128*k}")
            e(f"v_lshlrev_b32 v{vXB}, 16, v{vXB}")
            e(f"v_lshlrev_b32 v{vXB+1}, 16, v{vXB+1}")
            e(f"v_add_f32 v{vXB}, v{vXB}, v{vXB+1}")
            e("s_waitcnt lgkmcnt(0)")
            for k in range(4):
                e(f"v_add_f32 v{G5+k}, v{G5+k}, v{G5+k+4}")
            e(f"v_add_f32 v{G5}, v{G5}, v{G5+2}")
            e(f"v_add_f32 v{G5+1}, v{G5+1}, v{G5+3}")
            e(f"v_add_f32 v{G5}, v{G5}, v{G5+1}")
            e(f"v_add_f32 v{G5}, v{G5}, v{vXB}")
            e(f"v_cvt_pk_bf16_f32 v{G5}, v{G5}, v{G5}")
            e("s_mov_b64 exec, 0xffffffff")
            e(f"buffer_store_short v{G5}, v7, {srd(OUT)}, s{sA} offen")
            e("s_mov_b64 exec, -1")
            lab(Lf)
        lab(Lx)
        if o.stamps:
            e(f"s_memrealtime s[{sE}:{sF}]")
            e("s_waitcnt lgkmcnt(0)")
            Ls = self.newlabel("L_nostamp")
            e(f"s_cmp_lg_u32 s{sU}, {3 if loader else 0}")
            e(f"s_cbranch_scc1 {Ls}")
            e(f"s_and_b32 s{sWAVE}, s{sWAVE}, 4")
            e(f"v_writelane_b32 v{vST}, s{sE}, 15")
            e(f"v_writelane_b32 v{vST}, s{sSPIN}, 16")
            e(f"s_lshl_b32 s{sA}, s2, 8")
            e(f"s_lshl_b32 s{sB}, s{sWAVE}, 5")
            e(f"s_add_u32 s{sA}, s{sA}, s{sB}")
            e(f"s_add_u32 s{sA}, s{sA}, {STAMP_BASE}")
            e("v_lshlrev_b32 v3, 2, v0")
            e("s_mov_b64 exec, 0xffffffff")
            e(f"buffer_store_dword v{vST}, v3, {srd(WS)}, s{sA} offen")
            e("s_mov_b64 exec, -1")
            if o.dbg and not loader:
                c("debug[2+k] = max over WGs of (stamp[2+k] - nonce)")
                e(f"v_subrev_u32 v{vST}, s{sBT[3]}, v{vST}")
                e("v_cmp_gt_u32 vcc, 0x100000, v255")
                e("s_and_b32 exec_lo, vcc_lo, 0xfffc")
                e("s_mov_b32 exec_hi, 0")
                e(f"buffer_atomic_umax v{vST}, v3, {srd(DBG)}, 0 offen")
                e("s_mov_b64 exec, -1")
            lab(Ls)

def generate(opt):
    g = Gen(opt)
    g.build()
    hdr = open(f"cdna_kernels/{NAME}.s.ref").read().split(".amdgcn_target")[0]
    hdr = hdr.replace("grid=(8,1,1) block=(256,1,1) lds=0", f"grid=(256,1,1) block=(512,1,1) lds={LDS_BYTES}")
    s = hdr + f""".amdgcn_target "amdgcn-amd-amdhsa--gfx950"
.text
.globl {NAME}_kernel
.p2align 8
.type {NAME}_kernel,@function
{NAME}_kernel:
""" + "\n".join(g.L) + f"""
.section .rodata,"a"
.p2align 6
.amdhsa_kernel {NAME}_kernel
  .amdhsa_next_free_vgpr 256
  .amdhsa_next_free_sgpr 102
  .amdhsa_accum_offset 256
  .amdhsa_group_segment_fixed_size 0
  .amdhsa_kernarg_size 112
  .amdhsa_user_sgpr_count 2
  .amdhsa_user_sgpr_kernarg_segment_ptr 1
  .amdhsa_system_sgpr_workgroup_id_x 1
.end_amdhsa_kernel
"""
    return s

if __name__ == "__main__":
    opt = Opt()
    out = f"cdna_kernels/{NAME}.s"
    for a in sys.argv[1:]:
        if a == "--stamps": opt.stamps = True
        elif a.startswith("--out="): out = a[6:]
        elif a.startswith("--") and "=" in a:
            k, v = a[2:].split("="); setattr(opt, k, int(v))
    open(out, "w").write(generate(opt))
    print("wrote", out)
```

```python
import sys, struct

NAME = "parallel_sum__compressed_kv_cla__dense_activation_squared_relu__decode"

def f32bits(x):
    return struct.unpack("<I", struct.pack("<f", x))[0]

class Opt:
    stamps = False
    spin_limit = 1 << 16
    d2 = 20
    d3 = 10
    d5 = 25
    nt = 0
    wsoff = 0
    ntc = 0
    ntq = 0
    nto = 0
    wo_pre = 8
    gate = 1
    thr = 8
    thr2 = 4
    dbg = 0
    sig_at = 7
    rot = 1
    dn = 4
    lwo = 1
    warm = 0
    pre = 0
    x1 = 0
    x2 = 0
    x3 = 0
    lpos = 0
    lord = 0
    now1 = 0
    wo_pf = 1
    d3 = 30

H2_BASE = 0
H3_BASE = 0x100000
CS3 = 16384
HS3 = 8 * CS3
ST_BASE = 0x900000
H5_BASE = 0xA00000
PS5 = 8192 + 128
STAMP_BASE = 0x1000000
ROW = 1056
QC = 0
RED = 0
TR3 = 0
TRW = 2304
W2L = 0
W1L = 8448
RED2 = 16640
FIN = 17664 - 1024
XNB = 18432
PBUF = 22528
QBF = 22528
CTXC = 22528
CTX = 23040
SCL = 24064
MX = 26624
LS = 27136
HBUF = 27648
NONCE = 27904
CNT = 27920
TILE = 28672
LDS_BYTES = TILE + 128 * ROW
assert LDS_BYTES == 163840

X, CKV, WQ, WUK, WUV, WO, W1, B1, W2, B2, OUT, DBG, WS = [4 + 4 * i for i in range(13)]
sWAVE, sH, sJ, sBQ, sCHUNK, sHG, sQ, sF0 = range(56, 64)
sT = [64, 65, 66, 67]
sMASK, sPLO, sPHI, sCS = 68, 69, 70, 71
sA, sB, sC, sD, sE, sF = 72, 73, 74, 75, 76, 77
sDS, sDM = 78, 79
sSEL = 80
sSPIN = 82
sU = 83
sSTAMP0 = 84
sG = 100
sBT = [84, 85, 86, 87]
sM0, sM1, sM2, sMAG = 88, 89, 90, 91
sSTAMP0 = 92
vST = 255
vL, vR, vG = 0, 1, 2
vL16, vZ = 8, 9
vT = [12, 13, 14, 15]
vBT = [250, 251, 252, 253]
ACC = 16
QKA = 32
WOR = 96
PV1 = 160
vM = 224

def srd(b): return f"s[{b}:{b+3}]"
def vq(b, n=4): return f"v[{b}:{b+n-1}]"

class Gen:
    def __init__(self, opt):
        self.o = opt
        self.L = []
        self.nlabel = 0
        self.vm = []
        self.nt = " nt" if opt.nt else ""
    def e(self, s): self.L.append("    " + s)
    def lab(self, s): self.L.append(s + ":")
    def c(self, s): self.L.append("    ; " + s)
    def newlabel(self, p="L"):
        self.nlabel += 1
        return f"{p}_{self.nlabel}"
    def vmem(self, s, tag):
        self.e(s); self.vm.append(tag)
    def wait_vm(self, tag, extra=""):
        idx = max(i for i, t in enumerate(self.vm) if t == tag)
        n = len(self.vm) - 1 - idx
        assert n <= 63, (tag, n)
        self.e(f"s_waitcnt vmcnt({n}){extra}")
    def stamp(self, idx):
        if not self.o.stamps: return
        self.e(f"s_memrealtime s[{sE}:{sF}]")
        self.e("s_waitcnt lgkmcnt(0)")
        self.e(f"v_writelane_b32 v{vST}, s{sE}, {idx}")
    def nop(self, n):
        while n > 0:
            k = min(n, 16)
            self.e(f"s_nop {k-1}")
            n -= k
    def allreduce_mod4(self, v, tmp, op="v_add_f32"):
        e = self.e
        self.nop(2)
        e(f"{op} v{v}, v{v}, v{v} row_ror:4")
        self.nop(2)
        e(f"{op} v{v}, v{v}, v{v} row_ror:8")
        self.cross_rows(v, tmp, op)
    def cross_rows(self, v, tmp, op, do32=True):
        e = self.e
        e(f"v_mov_b32 v{tmp}, v{v}")
        self.nop(2)
        e(f"v_permlane16_swap_b32 v{v}, v{tmp}")
        e(f"{op} v{v}, v{v}, v{tmp}")
        if do32:
            e(f"v_mov_b32 v{tmp}, v{v}")
            self.nop(2)
            e(f"v_permlane32_swap_b32 v{v}, v{tmp}")
            e(f"{op} v{v}, v{v}, v{tmp}")
    def cnt_signal(self, k, vtmp):
        e = self.e
        e(f"v_mov_b32 v{vtmp}, 1")
        e("s_mov_b64 exec, 1")
        e(f"ds_add_u32 v{vZ}, v{vtmp} offset:{CNT+4*k}")
        e("s_mov_b64 exec, -1")
    def cnt_wait(self, k, target, vtmp):
        e = self.e
        Lp = self.newlabel("L_cw"); Lo = self.newlabel("L_cwok")
        self.lab(Lp)
        e(f"ds_read_b32 v{vtmp}, v{vZ} offset:{CNT+4*k}")
        e(f"s_add_u32 s{sSPIN}, s{sSPIN}, 1")
        e(f"s_cmp_gt_u32 s{sSPIN}, 0x60000000")
        e(f"s_cbranch_scc1 {Lo}")
        e("s_waitcnt lgkmcnt(0)")
        e(f"v_readfirstlane_b32 s{sG}, v{vtmp}")
        e(f"s_cmp_ge_u32 s{sG}, {target}")
        e(f"s_cbranch_scc0 {Lp}")
        self.lab(Lo)
        e("s_waitcnt lgkmcnt(0)")
    def check_quad(self, q, vacc):
        e = self.e
        for k in range(4):
            e(f"v_xor_b32 v{q+k}, s{sT[k]}, v{q+k}")
        e(f"v_or3_b32 v{vacc}, v{q}, v{q+1}, v{q+2}")
        e(f"v_or_b32 v{vacc}, v{vacc}, v{q+3}")
        e(f"v_and_b32 v{vacc}, 0xfff, v{vacc}")
        e(f"v_cmp_ne_u32 vcc, 0, v{vacc}")
    def gather(self, loads, regs, vacc, tag, bfp=0):
        e, lab = self.e, self.lab
        n = len(loads)
        sP = sG + 1
        Ltop = self.newlabel("L_g"); Ldone = self.newlabel("L_gdone")
        e(f"s_mov_b32 s{sP}, {(1 << n) - 1}")
        self.wait_vm(tag)
        lab(Ltop)
        for k in range(n):
            Ls = self.newlabel("L_gs")
            e(f"s_bitcmp1_b32 s{sP}, {k}")
            e(f"s_cbranch_scc0 {Ls}")
            if k < bfp: self.check_bfp(regs[k], vacc, vacc + 1)
            else: self.check_quad(regs[k], vacc)
            e(f"s_bitset0_b32 s{sP}, {k}")
            e(f"s_cbranch_vccz {Ls}")
            e(f"s_bitset1_b32 s{sP}, {k}")
            for l in loads[k]: e(l)
            lab(Ls)
        e(f"s_cmp_eq_u32 s{sP}, 0")
        e(f"s_cbranch_scc1 {Ldone}")
        e(f"s_add_u32 s{sSPIN}, s{sSPIN}, 0x10000")
        e(f"s_cmp_gt_u32 s{sSPIN}, 0x40000000")
        e(f"s_cbranch_scc1 {Ldone}")
        e("s_waitcnt vmcnt(0)")
        e(f"s_branch {Ltop}")
        lab(Ldone)
    def issue(self, loads, tag):
        for l in loads:
            for x in l[:-1]: self.e(x)
            self.vmem(l[-1], tag)

    def build(self):
        o = self.o
        e, c, lab = self.e, self.c, self.lab
        e("s_cmp_ge_u32 s2, 256")
        e("s_cbranch_scc1 L_end")
        offs = {X: 0, CKV: 8, WQ: 16, WUK: 24, WUV: 32, WO: 40, W1: 56, B1: 64, W2: 72, B2: 80, OUT: 88, DBG: 96, WS: 104}
        sizes = {X: 4096, CKV: 16 << 20, WQ: 4 << 20, WUK: 4 << 20, WUV: 4 << 20, WO: 4 << 20,
                 W1: 512 * 1792 * 2, B1: 1792 * 2, W2: 1792 * 512 * 2, B2: 1024, OUT: 4096, DBG: 256, WS: 1 << 28}
        for b in (X, DBG, WQ, WUK, CKV, WS, WO, W1, W2, B1, WUV, B2, OUT):
            e(f"s_load_dwordx2 s[{b}:{b+1}], s[0:1], {offs[b]}")
        for b in offs:
            e(f"s_mov_b32 s{b+2}, 0x{sizes[b]:x}")
            e(f"s_mov_b32 s{b+3}, 0x00020000")
        e("v_lshrrev_b32 v3, 6, v0")
        e("v_and_b32 v0, 63, v0")
        e(f"v_readfirstlane_b32 s{sWAVE}, v3")
        e(f"v_and_b32 v{vR}, 15, v0")
        e(f"v_lshrrev_b32 v{vG}, 4, v0")
        e(f"s_and_b32 s{sA}, s2, 7")
        e(f"s_lshr_b32 s{sB}, s2, 3")
        e(f"s_lshr_b32 s{sC}, s{sB}, 3")
        e(f"s_lshl_b32 s{sH}, s{sA}, 2")
        e(f"s_add_u32 s{sH}, s{sH}, s{sC}")
        e(f"s_and_b32 s{sJ}, s{sB}, 7")
        e(f"s_lshr_b32 s{sC}, s{sB}, 1")
        e(f"s_lshl_b32 s{sQ}, s{sA}, 4")
        e(f"s_add_u32 s{sQ}, s{sQ}, s{sC}")
        e(f"s_and_b32 s{sHG}, s{sB}, 1")
        e(f"s_lshr_b32 s{sBQ}, s{sQ}, 5")
        e(f"s_and_b32 s{sCHUNK}, s{sQ}, 31")
        e(f"s_mul_i32 s{sF0}, s{sA}, 28")
        e(f"s_add_u32 s{sF0}, s{sF0}, s{sB}")
        e(f"s_lshl_b32 s{sF0}, s{sF0}, 3")
        e(f"s_cmp_lt_u32 s{sB}, 28")
        e(f"s_cselect_b32 s{sF0}, s{sF0}, 1792")
        e(f"s_mov_b32 s{sMASK}, 0xfffff000")
        e(f"s_mov_b32 s{sPLO}, 0x05040100")
        e(f"s_mov_b32 s{sPHI}, 0x07060302")
        e(f"s_mov_b32 s{sCS}, 0x{f32bits(128 ** -0.5 * 1.4426950408889634):08x}")
        e(f"s_mov_b32 s{sSPIN}, 0")
        e(f"s_mov_b32 s{sM0}, 0x3ff")
        e(f"s_mov_b32 s{sM1}, 0xffc00")
        e(f"s_mov_b32 s{sM2}, 0x3ff00000")
        e(f"s_mov_b32 s{sMAG}, 0x4b400000")
        e(f"s_and_b32 s{sU}, s{sWAVE}, 3")
        e(f"v_lshlrev_b32 v{vL16}, 4, v0")
        e(f"v_mov_b32 v{vZ}, 0")
        if o.stamps:
            e(f"v_mov_b32 v{vST}, 0")
        e(f"s_cmp_ge_u32 s{sWAVE}, 4")
        e("s_cbranch_scc1 L_loader")
        self.vm = []
        self.light()
        e("s_branch L_end")
        lab("L_loader")
        self.vm = []
        self.loader()
        lab("L_end")
        e("s_endpgm")

    def layernorm_row(self, XR, U):
        e = self.e
        def allreduce64(v, tmp):
            for rr in (1, 2, 4, 8):
                self.nop(2)
                e(f"v_add_f32 v{v}, v{v}, v{v} row_ror:{rr}")
            self.cross_rows(v, tmp, "v_add_f32")
        for k in range(4):
            e(f"v_lshlrev_b32 v{U+2*k}, 16, v{XR+k}")
            e(f"v_and_b32 v{U+2*k+1}, 0xffff0000, v{XR+k}")
        e(f"v_pk_add_f32 v[4:5], {vq(U,2)}, {vq(U+2,2)}")
        e(f"v_pk_add_f32 v[6:7], {vq(U+4,2)}, {vq(U+6,2)}")
        e("v_pk_add_f32 v[4:5], v[4:5], v[6:7]")
        e("v_add_f32 v4, v4, v5")
        allreduce64(4, 5)
        e(f"v_mul_f32 v4, 0x{f32bits(1/512):08x}, v4")
        for k in range(8):
            e(f"v_sub_f32 v{U+8+k}, v{U+k}, v4")
        e(f"v_mul_f32 v6, v{U+8}, v{U+8}")
        e(f"v_mul_f32 v7, v{U+9}, v{U+9}")
        for k in range(1, 4):
            e(f"v_fmac_f32 v6, v{U+8+2*k}, v{U+8+2*k}")
            e(f"v_fmac_f32 v7, v{U+9+2*k}, v{U+9+2*k}")
        e("v_add_f32 v6, v6, v7")
        allreduce64(6, 5)
        e(f"v_mul_f32 v6, 0x{f32bits(1/512):08x}, v6")
        e("v_cvt_pk_bf16_f32 v4, v4, v6")
        e("v_and_b32 v6, 0xffff0000, v4")
        e("v_lshlrev_b32 v4, 16, v4")
        e(f"v_add_f32 v6, 0x{f32bits(1e-5):08x}, v6")
        e("v_cvt_pk_bf16_f32 v6, v6, v6")
        e("v_lshlrev_b32 v6, 16, v6")
        e("v_sqrt_f32 v6, v6")
        for k in range(8):
            e(f"v_sub_f32 v{U+k}, v{U+k}, v4")
        e("v_cvt_pk_bf16_f32 v6, v6, v6")
        e("v_lshlrev_b32 v6, 16, v6")
        e("v_rcp_f32 v6, v6")
        for k in range(4):
            e(f"v_cvt_pk_bf16_f32 v{XR+k}, v{U+2*k}, v{U+2*k+1}")
        for k in range(4):
            e(f"v_lshlrev_b32 v{U+2*k}, 16, v{XR+k}")
            e(f"v_and_b32 v{U+2*k+1}, 0xffff0000, v{XR+k}")
        for k in range(8):
            e(f"v_mul_f32 v{U+k}, v{U+k}, v6")
        for k in range(4):
            e(f"v_cvt_pk_bf16_f32 v{XR+k}, v{U+2*k}, v{U+2*k+1}")

    def xn_addr(self, v):
        e = self.e
        e(f"v_and_b32 v{v}, 3, v{vR}")
        e(f"v_lshlrev_b32 v{v}, 10, v{v}")
        e(f"v_lshl_add_u32 v{v}, v{vG}, 4, v{v}")
        e(f"s_lshl_b32 s{sA}, s{sU}, 8")
        e(f"v_add_u32 v{v}, s{sA}, v{v}")

    def light(self):
        o = self.o
        e, c, lab = self.e, self.c, self.lab
        nt = self.nt
        XN = ACC
        WQR = WOR
        WQT = PV1
        QACC = PV1 + 16
        WUKF = vM
        vNON = 10
        e(f"v_lshlrev_b32 v5, 16, v{vG}")
        e(f"v_lshl_add_u32 v5, v{vR}, 3, v5")
        e(f"v_lshlrev_b32 v6, 13, v{vR}")
        e(f"v_lshl_add_u32 v6, v{vG}, 4, v6")
        e("s_waitcnt lgkmcnt(0)")
        if o.wsoff:
            e(f"s_add_u32 s{WS}, s{WS}, {o.wsoff << 20}")
            e(f"s_addc_u32 s{WS+1}, s{WS+1}, 0")
            e(f"s_mov_b32 s{WS+2}, {(256 - o.wsoff) << 20}")
        self.stamp(0)
        Lskip = self.newlabel("L_nonce")
        e("s_cmp_ge_u32 s2, 8")
        e(f"s_cbranch_scc1 {Lskip}")
        e(f"s_cmp_lg_u32 s{sWAVE}, 3")
        e(f"s_cbranch_scc1 {Lskip}")
        e(f"s_memrealtime s[{sE}:{sF}]")
        e("v_mov_b32 v18, 0")
        e("v_mov_b32 v19, 0")
        e("s_waitcnt lgkmcnt(0)")
        e(f"s_or_b32 s{sF}, s{sF}, 0x80000000")
        e(f"v_mov_b32 v16, s{sE}")
        e(f"v_mov_b32 v17, s{sF}")
        e("s_mov_b64 exec, 1")
        e(f"buffer_atomic_cmpswap_x2 v[16:19], v{vZ}, {srd(DBG)}, 0 offen sc1")
        e("s_mov_b64 exec, -1")
        lab(Lskip)
        e("s_barrier")
        e(f"s_lshl_b32 s{sB}, s{sH}, 8")
        e(f"s_and_b32 s{sC}, s{sJ}, 1")
        e(f"s_lshl_b32 s{sC}, s{sC}, 7")
        e(f"s_add_u32 s{sB}, s{sB}, s{sC}")
        c("w_uk rows c = 128cq + 32v + 16 tile + r")
        e(f"s_lshr_b32 s{sA}, s{sJ}, 1")
        e(f"s_lshl_b32 s{sA}, s{sA}, 20")
        e(f"s_lshl_b32 s{sC}, s{sWAVE}, 18")
        e(f"s_add_u32 s{sA}, s{sA}, s{sC}")
        e(f"s_add_u32 s{sA}, s{sA}, s{sB}")
        e(f"s_add_u32 s{sC}, s{sA}, {16*8192}")
        for tl in range(2):
            for s in range(2):
                self.vmem(f"buffer_load_dwordx4 {vq(WUKF+(tl*2+s)*4)}, v6, {srd(WUK)}, s{sA if tl == 0 else sC} offen offset:{64*s}{' nt' if o.ntq else ''}", "wuk")
        e(f"s_lshl_b32 s{sD}, s{sWAVE}, 20")
        e(f"s_add_u32 s{sD}, s{sD}, s{sB}")
        e(f"s_lshr_b32 s{sC}, s{sJ}, 1")
        if not o.rot: e(f"s_mov_b32 s{sC}, 0")
        for s in range(4):
            e(f"s_add_u32 s{sA}, s{sC}, {s}")
            e(f"s_and_b32 s{sA}, s{sA}, 3")
            e(f"s_lshl_b32 s{sA}, s{sA}, 18")
            e(f"s_add_u32 s{sA}, s{sA}, s{sD}")
            for jj in range(8):
                self.vmem(f"buffer_load_dwordx2 {vq(WQR+(s*8+jj)*2,2)}, v5, {srd(WQ)}, s{sA} offen{' nt' if o.ntq else ''}", f"wq{s}")
                if jj < 7: e(f"s_add_u32 s{sA}, s{sA}, 8192")
        self.stamp(1)
        if o.gate == 0: self.cnt_signal(6, 3)
        self.xn_addr(4)
        self.cnt_wait(4, 4, 3)
        for s in range(4):
            e(f"s_add_u32 s{sA}, s{sC}, {s}")
            e(f"s_and_b32 s{sA}, s{sA}, 3")
            e(f"s_lshl_b32 s{sA}, s{sA}, 6")
            e(f"v_add_u32 v5, s{sA}, v4")
            e(f"ds_read_b128 {vq(XN+4*s)}, v5 offset:{XNB}")
        c("RED write addr v5 = v*1024 + r*64")
        e(f"s_lshl_b32 s{sA}, s{sWAVE}, 10")
        e(f"v_lshlrev_b32 v5, 6, v{vR}")
        e(f"v_add_u32 v5, s{sA}, v5")
        self.stamp(2)
        for s in range(4):
            self.wait_vm(f"wq{s}", " lgkmcnt(0)" if s == 0 else "")
            if o.gate == s + 1: self.cnt_signal(6, 3)
            for i in range(4):
                for t in range(4):
                    lo = WQR + (s * 8 + 2 * t) * 2 + (i >> 1)
                    hi = WQR + (s * 8 + 2 * t + 1) * 2 + (i >> 1)
                    e(f"v_perm_b32 v{WQT+i*4+t}, v{hi}, v{lo}, s{sPHI if i & 1 else sPLO}")
            self.nop(1)
            for i in range(4):
                cc = "0" if s == 0 else vq(QACC + 4 * i)
                e(f"v_mfma_f32_16x16x32_bf16 {vq(QACC+4*i)}, {vq(XN+4*s)}, {vq(WQT+i*4)}, {cc}")
            if s == 2:
                self.cnt_wait(8, 1, 3)
                e(f"ds_read_b64 v[10:11], v{vZ} offset:{NONCE}")
                e("s_waitcnt lgkmcnt(0)")
                self.decode_tags()
        self.stamp(3)
        e("s_mov_b64 exec, 0xffff")
        self.nop(5)
        for i in range(4):
            e(f"ds_write_b128 v5, {vq(QACC+4*i)} offset:{RED+16*i}")
        e("s_mov_b64 exec, -1")
        self.cnt_signal(0, 3)
        c("stage1: t = 64v+lane: d=t>>2, b=t&3 ; read RED + t*4 + k*1024 ; write QBF + b*128 + d*2")
        e(f"s_lshl_b32 s{sA}, s{sWAVE}, 8")
        e("v_lshlrev_b32 v6, 2, v0")
        e(f"v_add_u32 v6, s{sA}, v6")
        e("v_and_b32 v5, 3, v0")
        e("v_lshlrev_b32 v5, 7, v5")
        e("v_lshrrev_b32 v4, 2, v0")
        e("v_lshl_add_u32 v5, v4, 1, v5")
        e(f"s_lshl_b32 s{sA}, s{sWAVE}, 5")
        e(f"v_add_u32 v5, s{sA}, v5")
        self.cnt_wait(0, 4, 3)
        for k in range(4):
            e(f"ds_read_b32 v{WQT+k}, v6 offset:{RED+1024*k}")
        e("s_waitcnt lgkmcnt(0)")
        e(f"v_add_f32 v{WQT}, v{WQT}, v{WQT+1}")
        e(f"v_add_f32 v{WQT+2}, v{WQT+2}, v{WQT+3}")
        e(f"v_add_f32 v{WQT}, v{WQT}, v{WQT+2}")
        e(f"v_cvt_pk_bf16_f32 v{WQT}, v{WQT}, v{WQT}")
        e(f"ds_write_b16 v5, v{WQT} offset:{QBF}")
        self.cnt_signal(1, 3)
        c("q frag addr v4 = (r&3)*128 + 16g ; publish voff v5 = (r&3)*32768 + 16g")
        e(f"v_and_b32 v6, 3, v{vR}")
        e("v_lshlrev_b32 v4, 7, v6")
        e(f"v_lshl_add_u32 v4, v{vG}, 4, v4")
        e("v_lshlrev_b32 v5, 15, v6")
        e(f"v_lshl_add_u32 v5, v{vG}, 4, v5")
        c("soff = dhalf*131072 + h*1024 + cq*256 + v*64")
        e(f"s_and_b32 s{sA}, s{sJ}, 1")
        e(f"s_lshl_b32 s{sA}, s{sA}, 17")
        e(f"s_lshl_b32 s{sB}, s{sH}, 10")
        e(f"s_add_u32 s{sA}, s{sA}, s{sB}")
        e(f"s_lshr_b32 s{sB}, s{sJ}, 1")
        e(f"s_lshl_b32 s{sB}, s{sB}, 8")
        e(f"s_add_u32 s{sA}, s{sA}, s{sB}")
        e(f"s_lshl_b32 s{sB}, s{sWAVE}, 6")
        e(f"s_add_u32 s{sA}, s{sA}, s{sB}")
        self.cnt_wait(1, 4, 3)
        QF = WQT
        for s in range(2):
            e(f"ds_read_b128 {vq(QF+4*s)}, v4 offset:{QBF+64*s}")
        e("s_waitcnt lgkmcnt(0)")
        for s in range(2):
            for tl in range(2):
                cc = "0" if s == 0 else vq(QACC + 4 * tl)
                e(f"v_mfma_f32_16x16x32_bf16 {vq(QACC+4*tl)}, {vq(WUKF+(tl*2+s)*4)}, {vq(QF+4*s)}, {cc}")
        self.nop(8)
        if o.x2: e(f"s_sleep {o.x2}")
        self.bfp_pack([QACC + k for k in range(8)], QACC + 8, 3, 4)
        e("s_mov_b32 exec_lo, 0x000f000f")
        e("s_mov_b32 exec_hi, 0x000f000f")
        self.vmem(f"buffer_store_dwordx4 {vq(QACC+8)}, v5, {srd(WS)}, s{sA} offen sc1", "pub2")
        e("s_mov_b64 exec, -1")
        self.stamp(4)
        c("H2 base sD = bq*32768 + (16hg+4v)*1024 ; second part +131072 -> sC")
        e(f"s_lshl_b32 s{sD}, s{sBQ}, 15")
        e(f"s_lshl_b32 s{sA}, s{sHG}, 14")
        e(f"s_add_u32 s{sD}, s{sD}, s{sA}")
        e(f"s_lshl_b32 s{sA}, s{sWAVE}, 12")
        e(f"s_add_u32 s{sD}, s{sD}, s{sA}")
        e(f"s_add_u32 s{sC}, s{sD}, 131072")
        self.p2_addrs()
        if o.d2: e(f"s_sleep {o.d2}")
        H2R = QKA
        h2loads = []
        for hh in range(4):
            for p in range(2):
                h2loads.append([f"buffer_load_dwordx4 {vq(H2R+(hh*2+p)*4)}, v{vL16}, {srd(WS)}, s{[sD, sC][p]} offen offset:{1024*hh} sc1"])
        self.issue(h2loads, "h2")
        def lwo_blk():
            e(f"s_add_u32 s{sA}, s{sJ}, s{sU}")
            e(f"s_add_u32 s{sA}, s{sA}, 4")
            e(f"s_and_b32 s{sA}, s{sA}, 7")
            e(f"s_lshl_b32 s{sA}, s{sA}, 4")
            e(f"s_mul_i32 s{sSEL}, s{sA}, {ROW}")
            e(f"s_lshl_b32 s{sB}, s{sH}, 7")
            e(f"s_add_u32 s{sA}, s{sA}, s{sB}")
            e(f"s_lshl_b32 s{sA}, s{sA}, 10")
            for k in range(16):
                self.vmem(f"buffer_load_dwordx4 {vq(WOR+4*k)}, v{vL16}, {srd(WO)}, s{sA} offen offset:{1024*(k&3)}", "woe")
                if k & 3 == 3 and k < 15: e(f"s_add_u32 s{sA}, s{sA}, 4096")
        if o.lwo and o.lpos == 1: lwo_blk()
        self.stamp(5)
        self.gather(h2loads, [H2R + 4 * k for k in range(8)], 3, "h2", bfp=8)
        self.stamp(7)
        c("QC write addr v4 = 4v*ROW + (l>>2)*64 + (l&3)*8 ; imm hh*ROW (+32)")
        e(f"s_mul_i32 s{sA}, s{sWAVE}, {4*ROW}")
        e("v_lshrrev_b32 v4, 2, v0")
        e("v_lshlrev_b32 v4, 6, v4")
        e("v_and_b32 v3, 3, v0")
        e("v_lshl_add_u32 v4, v3, 3, v4")
        e(f"v_add_u32 v4, s{sA}, v4")
        FA = H2R + 32; FB = H2R + 40
        for hh in range(4):
            self.bfp_unpack(H2R + hh * 8, FA, 10)
            self.bfp_unpack(H2R + hh * 8 + 4, FB, 11)
            for k in range(8):
                e(f"v_mul_f32 v{FA+k}, v{FA+k}, v10")
            for k in range(8):
                e(f"v_fmac_f32 v{FA+k}, v{FB+k}, v11")
            o4 = H2R + hh * 8
            for k in range(4):
                e(f"v_cvt_pk_bf16_f32 v{o4+k}, v{FA+2*k}, v{FA+2*k+1}")
            e(f"ds_write_b64 v4, {vq(o4,2)} offset:{QC+hh*ROW}")
            e(f"ds_write_b64 v4, {vq(o4+2,2)} offset:{QC+hh*ROW+32}")
        self.cnt_signal(2, 3)
        if o.lwo and o.lpos == 0: lwo_blk()
        self.stamp(6)
        self.cnt_wait(7, 4, 3)
        self.prereads()
        self.cnt_wait(2, 4, 3)
        self.p2(loader=False)
        c("=========== after publish ===========")
        if o.lwo:
            e(f"s_add_u32 s{sSEL}, s{sSEL}, {TILE}")
            e(f"v_add_u32 v3, s{sSEL}, v{vL16}")
            self.wait_vm("woe")
            for k in range(16):
                e(f"ds_write_b128 v3, {vq(WOR+4*k)} offset:{ROW*k}")
        else:
            e("s_barrier")
            self.bulk2()
        c("H3 addrs: sD = H3 + (h*8+j)*CS3 + v*4096 ; stats v10 = (l&31)*16, sC = ST + (h*4+v)*512")
        e(f"s_lshl_b32 s{sD}, s{sH}, 3")
        e(f"s_add_u32 s{sD}, s{sD}, s{sJ}")
        e(f"s_mul_i32 s{sD}, s{sD}, {CS3}")
        e(f"s_lshl_b32 s{sA}, s{sWAVE}, 12")
        e(f"s_add_u32 s{sD}, s{sD}, s{sA}")
        e(f"s_add_u32 s{sD}, s{sD}, {H3_BASE}")
        e("v_and_b32 v10, 31, v0")
        e("v_lshlrev_b32 v10, 4, v10")
        e(f"s_lshl_b32 s{sC}, s{sH}, 2")
        e(f"s_add_u32 s{sC}, s{sC}, s{sWAVE}")
        e(f"s_lshl_b32 s{sC}, s{sC}, 9")
        e(f"s_add_u32 s{sC}, s{sC}, {ST_BASE}")
        self.tr_addr()
        self.wait_vm("bulk")
        self.cnt_signal(9, 3)
        if o.d3: e(f"s_sleep {o.d3}")
        D3 = PV1 + 16; ST3 = PV1 + 32; SC = PV1 + 36; A0 = PV1 + 40; FU = PV1 + 48
        h3loads = [[f"buffer_load_dwordx4 {vq(D3+4*t)}, v{vL16}, {srd(WS)}, s{sD} offen offset:{1024*t} sc1"] for t in range(4)]
        h3loads.append([f"buffer_load_dwordx4 {vq(ST3)}, v10, {srd(WS)}, s{sC} offen sc1"])
        self.issue(h3loads, "h3")
        self.stamp(10)
        self.stamp(11)
        self.gather(h3loads, [D3 + 4 * t for t in range(4)] + [ST3], 3, "h3", bfp=4)
        self.stamp(12)
        self.cnt_wait(9, 8, 3)
        self.wo_tr()
        e(f"v_lshrrev_b32 v{ST3+2}, 20, v{ST3+2}")
        e(f"v_lshrrev_b32 v{ST3+3}, 20, v{ST3+3}")
        e(f"v_or_b32 v{ST3}, v{ST3}, v{ST3+2}")
        e(f"v_or_b32 v{ST3+1}, v{ST3+1}, v{ST3+3}")
        e(f"v_mov_b32 v5, v{ST3}")
        for rr in (1, 2, 4, 8):
            self.nop(2)
            e(f"v_max_f32 v5, v5, v5 row_ror:{rr}")
        self.cross_rows(5, 6, "v_max_f32", do32=False)
        e(f"v_sub_f32 v{ST3}, v{ST3}, v5")
        e(f"v_exp_f32 v{ST3}, v{ST3}")
        c("SCL write v6 = v*128 + (c&7)*16 + (c>>3)*4, c = l&31 ; read v7 = v*128 + (l>>3)*16")
        e("v_and_b32 v6, 7, v0")
        e(f"v_mul_f32 v5, v{ST3}, v{ST3+1}")
        e("v_lshlrev_b32 v6, 4, v6")
        e("v_bfe_u32 v7, v0, 3, 2")
        e("v_add_f32 v5, v5, v5 row_ror:1")
        e("v_lshl_add_u32 v6, v7, 2, v6")
        e(f"s_lshl_b32 s{sA}, s{sWAVE}, 7")
        e("v_add_f32 v5, v5, v5 row_ror:2")
        e(f"v_add_u32 v6, s{sA}, v6")
        e("v_lshrrev_b32 v7, 3, v0")
        e("v_add_f32 v5, v5, v5 row_ror:4")
        e("v_lshlrev_b32 v7, 4, v7")
        e(f"v_add_u32 v7, s{sA}, v7")
        e("v_add_f32 v5, v5, v5 row_ror:8")
        self.cross_rows(5, 4, "v_add_f32", do32=False)
        e("v_rcp_f32 v5, v5")
        self.nop(1)
        e(f"v_mul_f32 v5, v5, v{ST3}")
        e(f"ds_write_b32 v6, v5 offset:{SCL}")
        e(f"ds_read_b128 {vq(SC)}, v7 offset:{SCL}")
        c("CTXC write addr v6 = v*128 + (32*((l>>2)&1) + 4*(l&3) + idx(g))*2")
        e("v_bfe_u32 v6, v0, 2, 1")
        e("v_lshlrev_b32 v6, 6, v6")
        e("v_and_b32 v7, 3, v0")
        e("v_lshl_add_u32 v6, v7, 3, v6")
        e(f"v_and_b32 v7, 1, v{vG}")
        e("v_lshl_add_u32 v6, v7, 2, v6")
        e(f"v_lshrrev_b32 v7, 1, v{vG}")
        e("v_lshl_add_u32 v6, v7, 1, v6")
        e(f"v_add_u32 v6, s{sA}, v6")
        for t in range(4):
            self.bfp_unpack(D3 + 4 * t, FU, 5)
            if t == 0: e("s_waitcnt lgkmcnt(0)")
            e(f"v_mul_f32 v5, v5, v{SC+t}")
            for k in range(8):
                if t == 0: e(f"v_mul_f32 v{A0+k}, v{FU+k}, v5")
                else: e(f"v_fmac_f32 v{A0+k}, v{FU+k}, v5")
        self.nop(1)
        for k in range(4):
            e(f"v_permlane32_swap_b32 v{A0+2*k}, v{A0+2*k+1}")
        for k in range(4):
            e(f"v_add_f32 v{A0+2*k}, v{A0+2*k}, v{A0+2*k+1}")
        self.nop(1)
        e(f"v_permlane16_swap_b32 v{A0}, v{A0+2}")
        e(f"v_permlane16_swap_b32 v{A0+4}, v{A0+6}")
        e(f"v_add_f32 v{A0}, v{A0}, v{A0+2}")
        e(f"v_add_f32 v{A0+4}, v{A0+4}, v{A0+6}")
        self.nop(1)
        e(f"v_add_f32 v{A0}, v{A0}, v{A0} row_ror:8")
        e(f"v_add_f32 v{A0+4}, v{A0+4}, v{A0+4} row_ror:8")
        e(f"v_cvt_pk_bf16_f32 v{A0}, v{A0}, v{A0+4}")
        e(f"ds_write_b16 v6, v{A0} offset:{CTXC}")
        e(f"ds_write_b16_d16_hi v6, v{A0} offset:{CTXC+32}")
        self.p3_addrs()
        e("s_waitcnt lgkmcnt(0)")
        e("s_barrier")
        self.ffn2()
        e("s_barrier")
        self.p3_tail(loader=False)

    def loader(self):
        o = self.o
        e, c, lab = self.e, self.c, self.lab
        nt = self.nt
        e("v_lshlrev_b32 v3, 2, v0")
        e(f"ds_write_b32 v3, v{vZ} offset:{HBUF}")
        e("s_mov_b64 exec, 0xffff")
        e(f"ds_write_b32 v3, v{vZ} offset:{CNT}")
        e("s_mov_b64 exec, -1")
        e(f"s_mul_i32 s{sDM}, s{sU}, {32*ROW}")
        e(f"s_add_u32 s{sDM}, s{sDM}, {TILE}")
        e(f"s_lshl_b32 s{sDS}, s{sQ}, 17")
        e(f"s_lshl_b32 s{sA}, s{sU}, 15")
        e(f"s_add_u32 s{sDS}, s{sDS}, s{sA}")
        e("s_waitcnt lgkmcnt(0)")
        if o.wsoff:
            e(f"s_add_u32 s{WS}, s{WS}, {o.wsoff << 20}")
            e(f"s_addc_u32 s{WS+1}, s{WS+1}, 0")
            e(f"s_mov_b32 s{WS+2}, {(256 - o.wsoff) << 20}")
        self.stamp(0)
        def dma(n):
            for k in range(n):
                e(f"s_mov_b32 m0, s{sDM}")
                e(f"s_add_u32 s{sDM}, s{sDM}, {ROW}")
                self.vmem(f"buffer_load_dwordx4 v{vL16}, {srd(CKV)}, s{sDS} offen{['', ' nt', ' sc0', ' sc1', ' sc1 nt', ' sc0 sc1'][o.ntc]} lds", "dma")
                e(f"s_add_u32 s{sDS}, s{sDS}, 1024")
                if o.thr and k >= o.thr - 1 and k < n - 1: e(f"s_waitcnt vmcnt({o.thr-1})")
        XR = PV1; U = PV1 + 8
        e(f"s_lshl_b32 s{sA}, s{sU}, 10")
        self.vmem(f"buffer_load_dwordx4 {vq(XR)}, v{vL16}, {srd(X)}, s{sA} offen", "x")
        e(f"v_add_u32 v3, s{sA}, v{vL16}")
        e("s_barrier")
        if o.pre:
            sv = o.thr; o.thr = 0; dma(o.pre); o.thr = sv
        self.wait_vm("x")
        self.layernorm_row(XR, U)
        e(f"ds_write_b128 v3, {vq(XR)} offset:{XNB}")
        self.cnt_signal(4, 3)
        if o.warm:
            Lw = self.newlabel("L_nowarm"); Lq = self.newlabel("L_warm")
            e(f"s_cmp_lg_u32 s{sWAVE}, 6")
            e(f"s_cbranch_scc1 {Lw}")
            e(f"s_getpc_b64 s[{sE}:{sF}]")
            e(f"L_pcref:")
            e(f"s_sub_u32 s{sE}, s{sE}, L_pcref-{NAME}_kernel")
            e(f"s_subb_u32 s{sF}, s{sF}, 0")
            e(f"s_mov_b32 s{sA}, 0")
            lab(Lq)
            for k in range(8):
                e(f"s_load_dword s{92+k}, s[{sE}:{sF}], {128*k}")
            e(f"s_add_u32 s{sE}, s{sE}, 1024")
            e(f"s_addc_u32 s{sF}, s{sF}, 0")
            e(f"s_add_u32 s{sA}, s{sA}, 1024")
            e(f"s_cmp_lt_u32 s{sA}, L_end-{NAME}_kernel-1024")
            e(f"s_cbranch_scc1 {Lq}")
            e("s_waitcnt lgkmcnt(0)")
            lab(Lw)
        Ln = self.newlabel("L_noncedone"); Lp = self.newlabel("L_noncepoll"); Lok = self.newlabel("L_nonceok")
        e(f"s_cmp_lg_u32 s{sWAVE}, 7")
        e(f"s_cbranch_scc1 {Ln}")
        if o.dn: e(f"s_sleep {o.dn}")
        e(f"s_load_dwordx2 s[{sE}:{sF}], s[{DBG}:{DBG+1}], 0")
        e("s_waitcnt lgkmcnt(0)")
        e(f"v_mov_b32 v10, s{sE}")
        e(f"v_mov_b32 v11, s{sF}")
        self.nop(1)
        lab(Lp)
        e(f"v_readfirstlane_b32 s{sA}, v11")
        e(f"s_bitcmp1_b32 s{sA}, 31")
        e(f"s_cbranch_scc1 {Lok}")
        e(f"s_add_u32 s{sSPIN}, s{sSPIN}, 0x10000")
        e(f"s_cmp_gt_u32 s{sSPIN}, 0x40000000")
        e(f"s_cbranch_scc1 {Lok}")
        e(f"buffer_load_dwordx2 v[10:11], v{vZ}, {srd(DBG)}, 0 offen sc1")
        e("s_waitcnt vmcnt(0)")
        e(f"s_branch {Lp}")
        lab(Lok)
        e(f"ds_write_b64 v{vZ}, v[10:11] offset:{NONCE}")
        self.cnt_signal(5+3, 3)
        lab(Ln)
        self.p2_addrs()
        if o.gate >= 0: self.cnt_wait(6, 4, 3)
        self.stamp(1)
        if o.x1: e(f"s_sleep {o.x1}")
        dma(32 - o.pre)
        self.stamp(2)
        c("early w_o rows (16j + 16u + k) & 127 -> regs")
        e(f"s_add_u32 s{sA}, s{sJ}, s{sU}")
        e(f"s_and_b32 s{sA}, s{sA}, 7")
        e(f"s_lshl_b32 s{sA}, s{sA}, 4")
        e(f"s_mul_i32 s{sSEL}, s{sA}, {ROW}")
        e(f"s_lshl_b32 s{sB}, s{sH}, 7")
        e(f"s_add_u32 s{sA}, s{sA}, s{sB}")
        e(f"s_lshl_b32 s{sA}, s{sA}, 10")
        def woe(k0, k1, thr):
            for k in range(k0, k1):
                if thr: e(f"s_waitcnt vmcnt({thr-1})")
                self.vmem(f"buffer_load_dwordx4 {vq(WOR+4*k)}, v{vL16}, {srd(WO)}, s{sDS} offen offset:{1024*(k&3)}{' nt' if o.nto else ''}", "woe")
                if k & 3 == 3 and k < 15: e(f"s_add_u32 s{sDS}, s{sDS}, 4096")
        e(f"s_mov_b32 s{sDS}, s{sA}")
        woe(0, o.sig_at + 1, o.thr)
        self.wait_vm("dma"); self.stamp(4); self.cnt_signal(7, 3)
        WUVR = ACC
        def wuv_blk():
            c("w_uv dword loads: rows 64j + 32s + 8g + jj, cols 32u + 2r ; voff v3 = g*65536 + r*4")
            e(f"v_lshlrev_b32 v3, 16, v{vG}")
            e(f"v_lshl_add_u32 v3, v{vR}, 2, v3")
            e(f"s_lshl_b32 s{sA}, s{sJ}, 19")
            e(f"s_lshl_b32 s{sB}, s{sH}, 8")
            e(f"s_add_u32 s{sA}, s{sA}, s{sB}")
            e(f"s_lshl_b32 s{sB}, s{sU}, 6")
            e(f"s_add_u32 s{sA}, s{sA}, s{sB}")
            for s in range(2):
                for jj in range(8):
                    self.vmem(f"buffer_load_dword v{WUVR+s*8+jj}, v3, {srd(WUV)}, s{sA} offen{nt}", "wuv")
                    if not (s == 1 and jj == 7):
                        e(f"s_add_u32 s{sA}, s{sA}, {8192 if jj < 7 else 8192*25}")
        if o.lord == 0:
            woe(o.sig_at + 1, 16, o.thr)
            wuv_blk()
        self.stamp(3)
        self.cnt_wait(7, 4, 3)
        self.prereads()
        self.stamp(5)
        if o.lord == 1: woe(o.sig_at + 1, 16, 0)
        e(f"ds_read_b64 v[10:11], v{vZ} offset:{NONCE}")
        e("s_waitcnt lgkmcnt(0)")
        self.decode_tags()
        self.cnt_wait(2, 4, 3)
        self.stamp(6)
        self.p2(loader=True)
        if not o.lwo: e("s_barrier")
        if o.lord == 1: wuv_blk()
        vB1 = 11
        e("v_lshrrev_b32 v4, 2, v0")
        e("v_and_b32 v4, 7, v4")
        e("v_lshlrev_b32 v4, 1, v4")
        e(f"s_lshl_b32 s{sC}, s{sF0}, 1")
        self.vmem(f"buffer_load_ushort v{vB1}, v4, {srd(B1)}, s{sC} offen", "wuv")
        if not o.lwo: self.bulk2()
        e(f"s_add_u32 s{sSEL}, s{sSEL}, {TILE}")
        e(f"v_add_u32 v3, s{sSEL}, v{vL16}")
        self.wait_vm("woe")
        for k in range(16):
            e(f"ds_write_b128 v3, {vq(WOR+4*k)} offset:{ROW*k}")
        self.tr_addr()
        XF = PV1 + 48; W1F = vM; FACC = vM + 16; T = vM + 20
        self.xn_addr(4)
        for s in range(4):
            e(f"ds_read_b128 {vq(XF+4*s)}, v4 offset:{XNB+64*s}")
        c("w1 tr addr v10 = W1L + (128u + 8g + rho)*16 + (kappa&1)*8")
        e(f"v_lshrrev_b32 v10, 2, v{vR}")
        e(f"v_lshl_add_u32 v10, v{vG}, 3, v10")
        e("v_lshlrev_b32 v10, 4, v10")
        e(f"v_and_b32 v4, 1, v{vR}")
        e("v_lshl_add_u32 v10, v4, 3, v10")
        e(f"s_lshl_b32 s{sA}, s{sU}, 11")
        e(f"v_add_u32 v10, s{sA}, v10")
        self.stamp(10)
        WUVF = PV1 + 16
        self.wait_vm("wuv")
        for s in range(2):
            for i in range(2):
                for t in range(4):
                    e(f"v_perm_b32 v{WUVF+(s*2+i)*4+t}, v{WUVR+s*8+2*t+1}, v{WUVR+s*8+2*t}, s{sPHI if i else sPLO}")
        self.wait_vm("bulk")
        self.cnt_signal(9, 3)
        self.cnt_wait(9, 8, 3)
        self.stamp(11)
        c("FFN1 (loaders)")
        for s in range(4):
            for hf in range(2):
                e(f"ds_read_b64_tr_b16 {vq(W1F+4*s+2*hf,2)}, v10 offset:{W1L+(32*s+4*hf)*16}")
        e(f"s_lshl_b32 s{sA}, s{sU}, 8")
        e(f"v_lshlrev_b32 v4, 4, v{vR}")
        e(f"v_add_u32 v4, s{sA}, v4")
        e("s_waitcnt lgkmcnt(0)")
        for s in range(4):
            cc = "0" if s == 0 else vq(FACC)
            e(f"v_mfma_f32_16x16x32_bf16 {vq(FACC)}, {vq(XF+4*s)}, {vq(W1F+4*s)}, {cc}")
        e("s_mov_b64 exec, 0xffff")
        self.nop(8)
        e(f"ds_write_b128 v4, {vq(FACC)} offset:{RED2}")
        e("s_mov_b64 exec, -1")
        self.cnt_signal(3, 3)
        self.wo_tr()
        Lh = self.newlabel("L_hdone")
        e(f"s_cmp_lg_u32 s{sU}, 0")
        e(f"s_cbranch_scc1 {Lh}")
        self.cnt_wait(3, 4, 3)
        e("v_lshlrev_b32 v4, 2, v0")
        for k in range(4):
            e(f"ds_read_b32 v{T+k}, v4 offset:{RED2+256*k}")
        e("v_and_b32 v5, 3, v0")
        e("v_lshlrev_b32 v5, 6, v5")
        e("v_lshrrev_b32 v4, 2, v0")
        e("v_lshl_add_u32 v5, v4, 1, v5")
        e(f"v_lshlrev_b32 v{vB1}, 16, v{vB1}")
        e("s_waitcnt lgkmcnt(0)")
        e(f"v_add_f32 v{T}, v{T}, v{T+1}")
        e(f"v_add_f32 v{T+2}, v{T+2}, v{T+3}")
        e(f"v_add_f32 v{T}, v{T}, v{T+2}")
        e(f"v_cvt_pk_bf16_f32 v{T}, v{T}, v{T}")
        e(f"v_lshlrev_b32 v{T}, 16, v{T}")
        e(f"v_add_f32 v{T}, v{T}, v{vB1}")
        e(f"v_cvt_pk_bf16_f32 v{T}, v{T}, v{T}")
        e(f"v_lshlrev_b32 v{T}, 16, v{T}")
        e(f"v_max_f32 v{T}, 0, v{T}")
        e(f"v_mul_f32 v{T}, v{T}, v{T}")
        e(f"v_cvt_pk_bf16_f32 v{T}, v{T}, v{T}")
        e(f"s_cmp_lt_u32 s{sF0}, 1792")
        e("s_cselect_b32 exec_lo, -1, 0")
        e("s_mov_b32 exec_hi, 0")
        e(f"ds_write_b16 v5, v{T} offset:{HBUF}")
        e("s_mov_b64 exec, -1")
        self.cnt_signal(5, 3)
        lab(Lh)
        self.cnt_wait(5, 1, 3)
        self.ffn2()
        self.p3_addrs()
        e(f"v_and_b32 v4, 3, v{vR}")
        e("v_lshlrev_b32 v3, 7, v4")
        e(f"v_lshl_add_u32 v3, v{vG}, 4, v3")
        e(f"s_lshl_b32 s{sB}, s{sU}, 6")
        e(f"v_add_u32 v4, s{sB}, v7")
        e("s_barrier")
        CF = PV1 + 32; CA = PV1 + 40
        for s in range(2):
            e(f"ds_read_b128 {vq(CF+4*s)}, v3 offset:{CTXC+64*s}")
        e("s_waitcnt lgkmcnt(0)")
        for s in range(2):
            for i in range(2):
                cc = "0" if s == 0 else vq(CA + 4 * i)
                e(f"v_mfma_f32_16x16x32_bf16 {vq(CA+4*i)}, {vq(WUVF+(s*2+i)*4)}, {vq(CF+4*s)}, {cc}")
        self.nop(8)
        for k in range(4):
            e(f"v_cvt_pk_bf16_f32 v{CF+k}, v{CA+k}, v{CA+4+k}")
        e(f"ds_write_b128 v4, {vq(CF)} offset:{CTX}")
        e("s_waitcnt lgkmcnt(0)")
        e("s_barrier")
        self.p3_tail(loader=True)

    def decode_tags(self):
        e = self.e
        e(f"v_readfirstlane_b32 s{sE}, v10")
        e(f"v_readfirstlane_b32 s{sF}, v11")
        self.nop(1)
        e(f"s_and_b32 s{sT[0]}, s{sE}, 0xfff")
        e(f"s_bfe_u32 s{sT[1]}, s{sE}, 0xc000c")
        e(f"s_lshr_b64 s[{sE}:{sF}], s[{sE}:{sF}], 24")
        e(f"s_and_b32 s{sT[2]}, s{sE}, 0xfff")
        e(f"s_bfe_u32 s{sT[3]}, s{sE}, 0xc000c")
        for k in range(4):
            e(f"v_mov_b32 v{vT[k]}, s{sT[k]}")
        e(f"v_readfirstlane_b32 s{sBT[3]}, v10")
        e(f"s_lshr_b32 s{sE}, s{sE}, 8")
        e(f"s_lshl_b32 s{sBT[0]}, s{sE}, 30")
        e(f"s_lshr_b32 s{sE}, s{sE}, 2")
        e(f"s_lshl_b32 s{sBT[1]}, s{sE}, 30")
        e(f"s_lshr_b32 s{sE}, s{sE}, 2")
        e(f"s_lshl_b32 s{sBT[2]}, s{sE}, 28")
        for k in range(4):
            e(f"v_mov_b32 v{vBT[k]}, s{sBT[k]}")
    def bfp_pack(self, V, D, t0, t1):
        e = self.e
        e(f"v_max3_f32 v{t0}, |v{V[0]}|, |v{V[1]}|, |v{V[2]}|")
        e(f"v_max3_f32 v{t1}, |v{V[3]}|, |v{V[4]}|, |v{V[5]}|")
        e(f"v_max3_f32 v{t0}, |v{V[6]}|, |v{V[7]}|, v{t0}")
        e(f"v_max_f32 v{t0}, v{t0}, v{t1}")
        e(f"v_and_b32 v{t0}, 0x7f800000, v{t0}")
        e(f"v_max_u32 v{t0}, 0x08000000, v{t0}")
        e(f"v_sub_u32 v{t1}, 0x82ff8000, v{t0}")
        for k in range(8):
            e(f"v_fma_f32 v{V[k]}, v{V[k]}, v{t1}, s{sMAG}")
        e(f"v_lshrrev_b32 v{t0}, 3, v{t0}")
        for k in (1, 4, 7): e(f"v_lshlrev_b32 v{V[k]}, 10, v{V[k]}")
        for k in (2, 5): e(f"v_lshlrev_b32 v{V[k]}, 20, v{V[k]}")
        e(f"v_or_b32 v{t0}, v{t0}, v{vBT[2]}")
        e(f"v_bfi_b32 v{V[0]}, s{sM0}, v{V[0]}, v{vBT[0]}")
        e(f"v_bfi_b32 v{V[3]}, s{sM0}, v{V[3]}, v{vBT[1]}")
        e(f"v_bfi_b32 v{V[6]}, s{sM0}, v{V[6]}, v{t0}")
        e(f"v_bfi_b32 v{V[0]}, s{sM1}, v{V[1]}, v{V[0]}")
        e(f"v_bfi_b32 v{V[3]}, s{sM1}, v{V[4]}, v{V[3]}")
        e(f"v_bfi_b32 v{D+2}, s{sM1}, v{V[7]}, v{V[6]}")
        e(f"v_bfi_b32 v{D}, s{sM2}, v{V[2]}, v{V[0]}")
        e(f"v_bfi_b32 v{D+1}, s{sM2}, v{V[5]}, v{V[3]}")
        e(f"v_mov_b32 v{D+3}, v{vBT[3]}")
    def check_bfp(self, q, vacc, t):
        e = self.e
        e(f"v_xor_b32 v{vacc}, s{sBT[0]}, v{q}")
        e(f"v_xor_b32 v{t}, s{sBT[1]}, v{q+1}")
        e(f"v_or_b32 v{vacc}, v{vacc}, v{t}")
        e(f"v_xor_b32 v{t}, s{sBT[2]}, v{q+2}")
        e(f"v_lshrrev_b32 v{vacc}, 30, v{vacc}")
        e(f"v_lshrrev_b32 v{t}, 28, v{t}")
        e(f"v_xor_b32 v{q+3}, s{sBT[3]}, v{q+3}")
        e(f"v_or3_b32 v{vacc}, v{vacc}, v{t}, v{q+3}")
        e(f"v_cmp_ne_u32 vcc, 0, v{vacc}")
    def bfp_unpack(self, q, F, sc):
        e = self.e
        e(f"v_lshlrev_b32 v{sc}, 3, v{q+2}")
        for k in range(8):
            e(f"v_bfe_i32 v{F+k}, v{q+k//3}, {10*(k%3)}, 10")
        e(f"v_and_b32 v{sc}, 0x7f800000, v{sc}")
        for k in range(8):
            e(f"v_cvt_f32_i32 v{F+k}, v{F+k}")
        e(f"v_add_u32 v{sc}, 0xfc004020, v{sc}")
    def p2_addrs(self):
        e = self.e
        self.c("tr base v6 = TILE + (4g+rho)*ROW + 128w + 8kappa ; v7 = v6 + 64*ROW ; QK A addr v5 = TILE + (16w+r)*ROW + 16g")
        e(f"v_lshrrev_b32 v6, 2, v{vR}")
        e(f"v_lshl_add_u32 v6, v{vG}, 2, v6")
        e(f"v_mul_u32_u24 v6, {ROW}, v6")
        e(f"v_and_b32 v7, 3, v{vR}")
        e("v_lshl_add_u32 v6, v7, 3, v6")
        e(f"s_lshl_b32 s{sA}, s{sWAVE}, 7")
        e(f"s_add_u32 s{sA}, s{sA}, {TILE}")
        e(f"v_add_u32 v6, s{sA}, v6")
        e(f"v_add_u32 v7, {64*ROW}, v6")
        e(f"s_lshl_b32 s{sA}, s{sWAVE}, 4")
        e(f"v_add_u32 v5, s{sA}, v{vR}")
        e(f"v_mul_u32_u24 v5, {ROW}, v5")
        e(f"v_lshl_add_u32 v5, v{vG}, 4, v5")
        e(f"v_add_u32 v5, {TILE}, v5")
    def prereads(self):
        e = self.e
        for s in range(16):
            e(f"ds_read_b128 {vq(QKA+4*s)}, v5 offset:{64*s}")
        for t in range(4):
            for i in range(4):
                for hf in range(2):
                    base = 6 if t < 2 else 7
                    off = ((32 * (t & 1)) + 16 * hf) * ROW + 32 * i
                    e(f"ds_read_b64_tr_b16 {vq(PV1+(i*4+t)*4+2*hf,2)}, v{base} offset:{off}")
        e("s_waitcnt lgkmcnt(0)")
    def tr_addr(self):
        e = self.e
        self.c("tr base (natural k map) v6 = TILE + (8g+rho)*ROW + 128w + 8kappa ; v7 = v6 + 64*ROW ; w2: v5 = W2L + rho*ROW + 128w + 8kappa")
        e(f"v_lshrrev_b32 v5, 2, v{vR}")
        e(f"v_lshl_add_u32 v6, v{vG}, 3, v5")
        e(f"v_mul_u32_u24 v6, {ROW}, v6")
        e(f"v_mul_u32_u24 v5, {ROW}, v5")
        e(f"v_and_b32 v7, 3, v{vR}")
        e("v_lshlrev_b32 v7, 3, v7")
        e(f"s_lshl_b32 s{sA}, s{sWAVE}, 7")
        e(f"v_add_u32 v7, s{sA}, v7")
        e("v_add_u32 v5, v5, v7")
        e("v_add_u32 v6, v6, v7")
        e(f"v_add_u32 v6, {TILE}, v6")
        e(f"v_add_u32 v7, {64*ROW}, v6")
    def wo_dma(self, first, n, tag):
        e = self.e
        for k in range(n):
            e(f"s_mov_b32 m0, s{sDM}")
            e(f"s_add_u32 s{sDM}, s{sDM}, {ROW}")
            self.vmem(f"buffer_load_dwordx4 v{vL16}, {srd(WO)}, s{sDS} offen{' nt' if self.o.nto else ''} lds", tag)
            e(f"s_add_u32 s{sDS}, s{sDS}, 1024")
            if first and self.o.thr2 and k >= self.o.thr2 - 1 and k < n - 1: e(f"s_waitcnt vmcnt({self.o.thr2-1})")
    def wo_setup(self, row0_sreg):
        e = self.e
        e(f"s_mul_i32 s{sDM}, s{row0_sreg}, {ROW}")
        e(f"s_add_u32 s{sDM}, s{sDM}, {TILE}")
        e(f"s_lshl_b32 s{sDS}, s{sH}, 7")
        e(f"s_add_u32 s{sDS}, s{sDS}, s{row0_sreg}")
        e(f"s_lshl_b32 s{sDS}, s{sDS}, 10")
    def ffn_dma(self):
        e = self.e
        self.c("w1 image: rows 64w + lane, 16 B at col f0 ; w2 row f0 + w")
        e("v_mul_u32_u24 v3, 3584, v0")
        e(f"s_mul_i32 s{sA}, s{sWAVE}, {64*3584}")
        e(f"s_lshl_b32 s{sB}, s{sF0}, 1")
        e(f"s_add_u32 s{sA}, s{sA}, s{sB}")
        e(f"s_lshl_b32 s{sB}, s{sWAVE}, 10")
        e(f"s_add_u32 s{sB}, s{sB}, {W1L}")
        e(f"s_mov_b32 m0, s{sB}")
        e(f"s_add_u32 s{sB}, s{sF0}, s{sWAVE}")
        if not self.o.now1: self.vmem(f"buffer_load_dwordx4 v3, {srd(W1)}, s{sA} offen{self.nt} lds", "bulk")
        e(f"s_lshl_b32 s{sB}, s{sB}, 10")
        e(f"s_mul_i32 s{sA}, s{sWAVE}, {ROW}")
        if W2L: e(f"s_add_u32 s{sA}, s{sA}, {W2L}")
        e(f"s_mov_b32 m0, s{sA}")
        e(f"s_nop 0")
        self.vmem(f"buffer_load_dwordx4 v{vL16}, {srd(W2)}, s{sB} offen{self.nt} lds", "bulk")
    def bulk2(self):
        e = self.e
        o = self.o
        e(f"s_lshl_b32 s{sA}, s{sJ}, 4")
        e(f"s_lshl_b32 s{sB}, s{sWAVE}, 3")
        e(f"s_add_u32 s{sA}, s{sA}, s{sB}")
        e(f"s_add_u32 s{sA}, s{sA}, 64")
        e(f"s_and_b32 s{sA}, s{sA}, 127")
        self.wo_setup(sA)
        self.wo_dma(1, 8, "bulk")
    W2F = PV1
    def wo_tr(self):
        e = self.e
        for i in range(4):
            for hf in range(2):
                e(f"ds_read_b64_tr_b16 {vq(self.W2F+4*i+2*hf,2)}, v5 offset:{W2L+4*hf*ROW+32*i}")
        for s in range(4):
            for i in range(4):
                for hf in range(2):
                    base = 6 if s < 2 else 7
                    off = ((32 * (s & 1)) + 4 * hf) * ROW + 32 * i
                    e(f"ds_read_b64_tr_b16 {vq(QKA+(i*4+s)*4+2*hf,2)}, v{base} offset:{off}")
    def ffn2(self):
        e = self.e
        HF = vM + 24
        e(f"v_and_b32 v3, 3, v{vR}")
        e("v_lshlrev_b32 v3, 6, v3")
        e(f"v_lshl_add_u32 v3, v{vG}, 4, v3")
        e(f"ds_read_b128 {vq(HF)}, v3 offset:{HBUF}")
        e("s_waitcnt lgkmcnt(0)")
        for i in range(4):
            e(f"v_mfma_f32_16x16x32_bf16 {vq(ACC+4*i)}, {vq(self.W2F+4*i)}, {vq(HF)}, 0")
    def p2(self, loader):
        o = self.o
        e, c, lab = self.e, self.c, self.lab
        S = vM; BW = vM + 4
        c("=========== QK ===========  qc addr v10 = r*ROW + 16g")
        e(f"v_mul_u32_u24 v10, {ROW}, v{vR}")
        e(f"v_lshl_add_u32 v10, v{vG}, 4, v10")
        for s in range(5):
            e(f"ds_read_b128 {vq(BW+4*s)}, v10 offset:{QC+64*s}")
        c("MX write addr v11 = r*32 + w*4 ; read v4 = r*32 ; LS addr v3")
        e(f"v_lshlrev_b32 v4, 5, v{vR}")
        e(f"s_lshl_b32 s{sA}, s{sWAVE}, 2")
        e(f"v_add_u32 v11, s{sA}, v4")
        for s in range(16):
            e(f"s_waitcnt lgkmcnt({min(4, 15-s)})")
            cc = "0" if s == 0 else vq(S)
            e(f"v_mfma_f32_16x16x32_bf16 {vq(S)}, {vq(QKA+4*s)}, {vq(BW+4*(s%5))}, {cc}")
            if s + 5 < 16:
                e(f"ds_read_b128 {vq(BW+4*(s%5))}, v10 offset:{QC+64*(s+5)}")
        c("PBUF write addr v10 = (w>>1)*1024 + lane*16 + (w&1)*8")
        e(f"s_lshr_b32 s{sA}, s{sWAVE}, 1")
        e(f"s_lshl_b32 s{sA}, s{sA}, 10")
        e(f"s_and_b32 s{sB}, s{sWAVE}, 1")
        e(f"s_lshl_b32 s{sB}, s{sB}, 3")
        e(f"s_add_u32 s{sA}, s{sA}, s{sB}")
        e(f"v_add_u32 v10, s{sA}, v{vL16}")
        self.nop(2)
        e(f"v_max3_f32 v5, v{S}, v{S+1}, v{S+2}")
        e(f"v_max_f32 v5, v5, v{S+3}")
        self.cross_rows(5, 3, "v_max_f32")
        e(f"ds_write_b32 v11, v5 offset:{MX}")
        e("s_waitcnt lgkmcnt(0)")
        self.stamp(8)
        e("s_barrier")
        MXR = vM + 8
        e(f"ds_read_b128 {vq(MXR)}, v4 offset:{MX}")
        e(f"ds_read_b128 {vq(MXR+4)}, v4 offset:{MX+16}")
        self.ffn_dma()
        e("s_waitcnt lgkmcnt(0)")
        e(f"v_max3_f32 v5, v{MXR}, v{MXR+1}, v{MXR+2}")
        e(f"v_max3_f32 v3, v{MXR+3}, v{MXR+4}, v{MXR+5}")
        e(f"v_max3_f32 v5, v5, v{MXR+6}, v{MXR+7}")
        e("v_max_f32 v5, v5, v3")
        e(f"v_mul_f32 v5, s{sCS}, v5")
        for k in range(4):
            e(f"v_fma_f32 v{S+k}, v{S+k}, s{sCS}, -v5")
        for k in range(4):
            e(f"v_exp_f32 v{S+k}, v{S+k}")
        self.nop(1)
        e(f"v_pk_add_f32 {vq(MXR,2)}, {vq(S,2)}, {vq(S+2,2)}")
        e(f"v_cvt_pk_bf16_f32 v{S}, v{S}, v{S+1}")
        e(f"v_cvt_pk_bf16_f32 v{S+1}, v{S+2}, v{S+3}")
        e(f"ds_write_b64 v10, {vq(S,2)} offset:{PBUF}")
        e(f"v_add_f32 v{MXR}, v{MXR}, v{MXR+1}")
        self.cross_rows(MXR, MXR + 1, "v_add_f32")
        e(f"ds_write_b32 v11, v{MXR} offset:{LS}")
        c("H3 publish: voff v4 = (r&7)*HS3 + (r>>3)*64 + 16g ; sA = H3 + hg*16*HS3 + w*CS3 + bq*4096 + chunk*128 ; +8*HS3 -> sC")
        e(f"v_and_b32 v4, 7, v{vR}")
        e(f"v_mul_u32_u24 v4, {HS3}, v4")
        e(f"v_lshl_add_u32 v4, v{vG}, 4, v4")
        e(f"v_lshrrev_b32 v3, 3, v{vR}")
        e("v_lshl_add_u32 v4, v3, 6, v4")
        e("s_mov_b32 vcc_lo, 0xff00ff00")
        e("s_mov_b32 vcc_hi, 0xff00ff00")
        e(f"s_mul_i32 s{sA}, s{sHG}, {16*HS3}")
        e(f"s_mul_i32 s{sB}, s{sWAVE}, {CS3}")
        e(f"s_add_u32 s{sA}, s{sA}, s{sB}")
        e(f"s_lshl_b32 s{sB}, s{sBQ}, 12")
        e(f"s_add_u32 s{sA}, s{sA}, s{sB}")
        e(f"s_lshl_b32 s{sB}, s{sCHUNK}, 7")
        e(f"s_add_u32 s{sA}, s{sA}, s{sB}")
        e(f"s_add_u32 s{sA}, s{sA}, {H3_BASE}")
        e(f"s_add_u32 s{sC}, s{sA}, {8*HS3}")
        e("s_waitcnt lgkmcnt(0)")
        self.stamp(17)
        e("s_barrier")
        self.stamp(18)
        PF = vM; PACC = QKA
        for t in range(4):
            e(f"ds_read_b128 {vq(PF+4*t)}, v{vL16} offset:{PBUF+1024*t}")
        for half in range(2):
            for t in range(4):
                if half == 0: e(f"s_waitcnt lgkmcnt({3-t})")
                for i in range(2 * half, 2 * half + 2):
                    cc = "0" if t == 0 else vq(PACC + 4 * i)
                    e(f"v_mfma_f32_16x16x32_bf16 {vq(PACC+4*i)}, {vq(PV1+(i*4+t)*4)}, {vq(PF+4*t)}, {cc}")
        self.stamp(19)
        if o.x3: e(f"s_sleep {o.x3}")
        GA = QKA + 16; GB = QKA + 20; GX = QKA + 24; GY = QKA + 28
        self.bfp_pack([PACC + k for k in range(8)], GA, 6, 7)
        self.bfp_pack([PACC + 8 + k for k in range(8)], GB, 6, 7)
        c("exchange B_r (lane r<8) <-> A_{r+8} (lane r+8): X = lane<8 ? B : A ; Y = ror8(X) ; S1 = lane<8 ? A : Y ; S2 = lane<8 ? Y : B")
        for k in range(3):
            e(f"v_cndmask_b32 v{GX+k}, v{GB+k}, v{GA+k}, vcc")
        self.nop(1)
        for k in range(3):
            e(f"v_mov_b32 v{GY+k}, v{GX+k} row_ror:8")
        for k in range(3):
            e(f"v_cndmask_b32 v{GA+k}, v{GA+k}, v{GY+k}, vcc")
        self.vmem(f"buffer_store_dwordx4 {vq(GA)}, v4, {srd(WS)}, s{sA} offen sc1", "pub3")
        for k in range(3):
            e(f"v_cndmask_b32 v{GB+k}, v{GY+k}, v{GB+k}, vcc")
        self.vmem(f"buffer_store_dwordx4 {vq(GB)}, v4, {srd(WS)}, s{sC} offen sc1", "pub3")
        if loader:
            Ls = self.newlabel("L_statdone")
            e(f"s_cmp_lg_u32 s{sWAVE}, 7")
            e(f"s_cbranch_scc1 {Ls}")
            ONES = PV1 + 56; LACC = PV1 + 48
            e(f"v_lshlrev_b32 v3, 5, v{vR}")
            e(f"ds_read_b128 {vq(LACC)}, v3 offset:{LS}")
            e(f"ds_read_b128 {vq(LACC+4)}, v3 offset:{LS+16}")
            e("s_waitcnt lgkmcnt(0)")
            e(f"v_pk_add_f32 {vq(LACC,2)}, {vq(LACC,2)}, {vq(LACC+2,2)}")
            e(f"v_pk_add_f32 {vq(LACC+4,2)}, {vq(LACC+4,2)}, {vq(LACC+6,2)}")
            e(f"v_pk_add_f32 {vq(LACC,2)}, {vq(LACC,2)}, {vq(LACC+4,2)}")
            e(f"v_add_f32 v{LACC}, v{LACC}, v{LACC+1}")
            c("addr voff = r*2048 ; soff = ST + hg*16*2048 + bq*512 + chunk*16")
            e(f"v_lshlrev_b32 v3, 11, v{vR}")
            e(f"s_lshl_b32 s{sA}, s{sHG}, 15")
            e(f"s_lshl_b32 s{sB}, s{sBQ}, 9")
            e(f"s_add_u32 s{sA}, s{sA}, s{sB}")
            e(f"s_lshl_b32 s{sB}, s{sCHUNK}, 4")
            e(f"s_add_u32 s{sA}, s{sA}, s{sB}")
            e(f"s_add_u32 s{sA}, s{sA}, {ST_BASE}")
            e(f"v_bfi_b32 v{ONES}, s{sMASK}, v5, v{vT[0]}")
            e(f"v_bfi_b32 v{ONES+1}, s{sMASK}, v{LACC}, v{vT[1]}")
            e(f"v_lshl_or_b32 v{ONES+2}, v5, 20, v{vT[2]}")
            e(f"v_lshl_or_b32 v{ONES+3}, v{LACC}, 20, v{vT[3]}")
            e("s_mov_b64 exec, 0xffff")
            e(f"buffer_store_dwordx4 {vq(ONES)}, v3, {srd(WS)}, s{sA} offen sc1")
            e("s_mov_b64 exec, -1")
            self.nop(2)
            lab(Ls)
        self.stamp(9)
    def p3_addrs(self):
        e = self.e
        self.c("ctx read v7 = (r&3)*256 + 16g ; H5 publish v6 = (r&3)*2048 + (r>>2)*64 + 16g ; sA = H5 + wg*PS5 + w*256")
        e(f"v_and_b32 v6, 3, v{vR}")
        e("v_lshlrev_b32 v7, 8, v6")
        e(f"v_lshl_add_u32 v7, v{vG}, 4, v7")
        e("v_lshlrev_b32 v6, 11, v6")
        e(f"v_lshl_add_u32 v6, v{vG}, 4, v6")
        e(f"v_lshrrev_b32 v5, 2, v{vR}")
        e("v_lshl_add_u32 v6, v5, 6, v6")
        e(f"s_mul_i32 s{sA}, s2, {PS5}")
        e(f"s_lshl_b32 s{sB}, s{sWAVE}, 8")
        e(f"s_add_u32 s{sA}, s{sA}, s{sB}")
        e(f"s_add_u32 s{sA}, s{sA}, {H5_BASE}")
        e(f"v_cmp_eq_u32 s[{sSEL}:{sSEL+1}], 1, v5")
        e(f"v_cmp_eq_u32 s[{sE}:{sF}], 2, v5")
        e(f"v_cmp_eq_u32 s[{sDS}:{sDM}], 3, v5")
    def p3_tail(self, loader):
        o = self.o
        e, c, lab = self.e, self.c, self.lab
        XF = vM
        for s in range(4):
            e(f"ds_read_b128 {vq(XF+4*s)}, v7 offset:{CTX+64*s}")
        for s in range(4):
            e(f"s_waitcnt lgkmcnt({3-s})")
            for i in range(4):
                e(f"v_mfma_f32_16x16x32_bf16 {vq(ACC+4*i)}, {vq(QKA+(i*4+s)*4)}, {vq(XF+4*s)}, {vq(ACC+4*i)}")
        G = vM + 16
        self.nop(6)
        for k in range(4):
            e(f"v_cndmask_b32 v{G+k}, v{ACC+k}, v{ACC+4+k}, s[{sSEL}:{sSEL+1}]")
        for k in range(4):
            e(f"v_cndmask_b32 v{G+k}, v{G+k}, v{ACC+8+k}, s[{sE}:{sF}]")
        for k in range(4):
            e(f"v_cndmask_b32 v{G+k}, v{G+k}, v{ACC+12+k}, s[{sDS}:{sDM}]")
        for i in range(4):
            e(f"v_bfi_b32 v{G+i}, s{sMASK}, v{G+i}, v{vT[i]}")
        self.vmem(f"buffer_store_dwordx4 {vq(G)}, v6, {srd(WS)}, s{sA} offen sc1", "pub5")
        self.stamp(13)
        Lx = self.newlabel("L_exit")
        e("s_cmp_ge_u32 s2, 64")
        e(f"s_cbranch_scc1 {Lx}")
        e("v_lshrrev_b32 v10, 3, v0")
        e(f"v_mul_u32_u24 v10, {PS5}, v10")
        e("v_and_b32 v11, 7, v0")
        e("v_lshl_add_u32 v10, v11, 4, v10")
        e(f"s_mul_i32 s{sB}, s{sWAVE}, {32*PS5}")
        e(f"s_lshl_b32 s{sD}, s2, 7")
        e(f"s_add_u32 s{sB}, s{sB}, s{sD}")
        e(f"s_add_u32 s{sB}, s{sB}, {H5_BASE}")
        bases = [sB, sC, sDS, sDM]
        for t in range(1, 4): e(f"s_add_u32 s{bases[t]}, s{sB}, {t*8*PS5}")
        vXB = WOR
        if not loader:
            e("v_and_b32 v7, 31, v0")
            e("v_lshlrev_b32 v7, 1, v7")
            e(f"s_lshl_b32 s{sA}, s2, 6")
            e(f"s_and_b32 s{sD}, s{sA}, 1023")
            self.vmem(f"buffer_load_ushort v{vXB}, v7, {srd(X)}, s{sA} offen", "xb")
            self.vmem(f"buffer_load_ushort v{vXB+1}, v7, {srd(B2)}, s{sD} offen", "xb")
        if o.d5: e(f"s_sleep {o.d5}")
        G5 = QKA
        loads = [[f"buffer_load_dwordx4 {vq(G5+4*t)}, v10, {srd(WS)}, s{bases[t]} offen sc1"] for t in range(4)]
        self.issue(loads, "h5")
        self.gather(loads, [G5 + 4 * t for t in range(4)], 3, "h5")
        self.stamp(14)
        e(f"v_pk_add_f32 {vq(G5,2)}, {vq(G5,2)}, {vq(G5+4,2)}")
        e(f"v_pk_add_f32 {vq(G5+2,2)}, {vq(G5+2,2)}, {vq(G5+6,2)}")
        e(f"v_pk_add_f32 {vq(G5+8,2)}, {vq(G5+8,2)}, {vq(G5+12,2)}")
        e(f"v_pk_add_f32 {vq(G5+10,2)}, {vq(G5+10,2)}, {vq(G5+14,2)}")
        e(f"v_pk_add_f32 {vq(G5,2)}, {vq(G5,2)}, {vq(G5+8,2)}")
        e(f"v_pk_add_f32 {vq(G5+2,2)}, {vq(G5+2,2)}, {vq(G5+10,2)}")
        e("v_lshlrev_b32 v11, 4, v11")
        e(f"v_and_b32 v4, 1, v{vG}")
        e(f"v_permlane32_swap_b32 v{G5}, v{G5+1}")
        e(f"v_permlane32_swap_b32 v{G5+2}, v{G5+3}")
        e(f"v_add_f32 v{G5}, v{G5}, v{G5+1}")
        e(f"v_add_f32 v{G5+2}, v{G5+2}, v{G5+3}")
        e("v_lshl_add_u32 v11, v4, 3, v11")
        e(f"v_lshrrev_b32 v4, 1, v{vG}")
        e(f"v_permlane16_swap_b32 v{G5}, v{G5+2}")
        e(f"v_add_f32 v{G5}, v{G5}, v{G5+2}")
        e("v_lshl_add_u32 v11, v4, 2, v11")
        e(f"s_lshl_b32 s{sC}, s{sWAVE}, 7")
        e(f"v_add_f32 v{G5}, v{G5}, v{G5} row_ror:8")
        e(f"v_add_u32 v11, s{sC}, v11")
        e(f"ds_write_b32 v11, v{G5} offset:{FIN}")
        e("s_waitcnt lgkmcnt(0)")
        e("s_barrier")
        if not loader:
            Lf = self.newlabel("L_fin")
            e(f"s_cmp_lg_u32 s{sWAVE}, 0")
            e(f"s_cbranch_scc1 {Lf}")
            e("v_lshlrev_b32 v11, 1, v7")
            for k in range(8):
                e(f"ds_read_b32 v{G5+k}, v11 offset:{FIN+128*k}")
            e(f"v_lshlrev_b32 v{vXB}, 16, v{vXB}")
            e(f"v_lshlrev_b32 v{vXB+1}, 16, v{vXB+1}")
            e(f"v_add_f32 v{vXB}, v{vXB}, v{vXB+1}")
            e("s_waitcnt lgkmcnt(0)")
            for k in range(4):
                e(f"v_add_f32 v{G5+k}, v{G5+k}, v{G5+k+4}")
            e(f"v_add_f32 v{G5}, v{G5}, v{G5+2}")
            e(f"v_add_f32 v{G5+1}, v{G5+1}, v{G5+3}")
            e(f"v_add_f32 v{G5}, v{G5}, v{G5+1}")
            e(f"v_add_f32 v{G5}, v{G5}, v{vXB}")
            e(f"v_cvt_pk_bf16_f32 v{G5}, v{G5}, v{G5}")
            e("s_mov_b64 exec, 0xffffffff")
            e(f"buffer_store_short v{G5}, v7, {srd(OUT)}, s{sA} offen")
            e("s_mov_b64 exec, -1")
            lab(Lf)
        lab(Lx)
        if o.stamps:
            e(f"s_memrealtime s[{sE}:{sF}]")
            e("s_waitcnt lgkmcnt(0)")
            Ls = self.newlabel("L_nostamp")
            e(f"s_cmp_lg_u32 s{sU}, {3 if loader else 0}")
            e(f"s_cbranch_scc1 {Ls}")
            e(f"s_and_b32 s{sWAVE}, s{sWAVE}, 4")
            e(f"v_writelane_b32 v{vST}, s{sE}, 15")
            e(f"v_writelane_b32 v{vST}, s{sSPIN}, 16")
            e(f"s_lshl_b32 s{sA}, s2, 8")
            e(f"s_lshl_b32 s{sB}, s{sWAVE}, 5")
            e(f"s_add_u32 s{sA}, s{sA}, s{sB}")
            e(f"s_add_u32 s{sA}, s{sA}, {STAMP_BASE}")
            e("v_lshlrev_b32 v3, 2, v0")
            e("s_mov_b64 exec, 0xffffffff")
            e(f"buffer_store_dword v{vST}, v3, {srd(WS)}, s{sA} offen")
            e("s_mov_b64 exec, -1")
            if o.dbg and not loader:
                c("debug[2+k] = max over WGs of (stamp[2+k] - nonce)")
                e(f"v_subrev_u32 v{vST}, s{sBT[3]}, v{vST}")
                e("v_cmp_gt_u32 vcc, 0x100000, v255")
                e("s_and_b32 exec_lo, vcc_lo, 0xfffc")
                e("s_mov_b32 exec_hi, 0")
                e(f"buffer_atomic_umax v{vST}, v3, {srd(DBG)}, 0 offen")
                e("s_mov_b64 exec, -1")
            lab(Ls)

def generate(opt):
    g = Gen(opt)
    g.build()
    hdr = open(f"cdna_kernels/{NAME}.s.ref").read().split(".amdgcn_target")[0]
    hdr = hdr.replace("grid=(8,1,1) block=(256,1,1) lds=0", f"grid=(256,1,1) block=(512,1,1) lds={LDS_BYTES}")
    s = hdr + f""".amdgcn_target "amdgcn-amd-amdhsa--gfx950"
.text
.globl {NAME}_kernel
.p2align 8
.type {NAME}_kernel,@function
{NAME}_kernel:
""" + "\n".join(g.L) + f"""
.section .rodata,"a"
.p2align 6
.amdhsa_kernel {NAME}_kernel
  .amdhsa_next_free_vgpr 256
  .amdhsa_next_free_sgpr 102
  .amdhsa_accum_offset 256
  .amdhsa_group_segment_fixed_size 0
  .amdhsa_kernarg_size 112
  .amdhsa_user_sgpr_count 2
  .amdhsa_user_sgpr_kernarg_segment_ptr 1
  .amdhsa_system_sgpr_workgroup_id_x 1
.end_amdhsa_kernel
"""
    return s

if __name__ == "__main__":
    opt = Opt()
    out = f"cdna_kernels/{NAME}.s"
    for a in sys.argv[1:]:
        if a == "--stamps": opt.stamps = True
        elif a.startswith("--out="): out = a[6:]
        elif a.startswith("--") and "=" in a:
            k, v = a[2:].split("="); setattr(opt, k, int(v))
    open(out, "w").write(generate(opt))
    print("wrote", out)
```

```python
import sys, struct

NAME = "parallel_sum__compressed_kv_cla__dense_activation_squared_relu__decode"

def f32bits(x):
    return struct.unpack("<I", struct.pack("<f", x))[0]

class Opt:
    stamps = False
    spin_limit = 1 << 16
    d2 = 20
    d3 = 10
    d5 = 25
    nt = 0
    wsoff = 0
    ntc = 0
    ntq = 0
    nto = 0
    wo_pre = 8
    gate = 1
    thr = 8
    thr2 = 4
    dbg = 0
    sig_at = 5
    rot = 1
    dn = 4
    lwo = 1
    d3l = 0
    pre = 0
    x1 = 0
    x2 = 0
    x3 = 0
    lpos = 0
    lord = 0
    now1 = 0
    wo_pf = 1
    d3 = 30

H2_BASE = 0
H3_BASE = 0x100000
CS3 = 16384
HS3 = 8 * CS3
ST_BASE = 0x900000
H5_BASE = 0xA00000
PS5 = 8192 + 128
STAMP_BASE = 0x1000000
ROW = 1056
QC = 0
RED = 0
TR3 = 0
TRW = 2304
W2L = 0
W1L = 8448
RED2 = 16640
FIN = 17664 - 1024
XNB = 18432
PBUF = 22528
QBF = 22528
CTXC = 22528
CTX = 23552
SCL = 24064
MX = 26624
LS = 27136
HBUF = 27648
NONCE = 27904
CNT = 27920
TILE = 28672
LDS_BYTES = TILE + 128 * ROW
assert LDS_BYTES == 163840

X, CKV, WQ, WUK, WUV, WO, W1, B1, W2, B2, OUT, DBG, WS = [4 + 4 * i for i in range(13)]
sWAVE, sH, sJ, sBQ, sCHUNK, sHG, sQ, sF0 = range(56, 64)
sT = [64, 65, 66, 67]
sMASK, sPLO, sPHI, sCS = 68, 69, 70, 71
sA, sB, sC, sD, sE, sF = 72, 73, 74, 75, 76, 77
sDS, sDM = 78, 79
sSEL = 80
sSPIN = 82
sU = 83
sSTAMP0 = 84
sG = 100
sBT = [84, 85, 86, 87]
sM0, sM1, sM2, sMAG = 88, 89, 90, 91
sSTAMP0 = 92
vST = 255
vL, vR, vG = 0, 1, 2
vL16, vZ = 8, 9
vT = [12, 13, 14, 15]
vBT = [250, 251, 252, 253]
ACC = 16
QKA = 32
WOR = 96
PV1 = 160
vM = 224

def srd(b): return f"s[{b}:{b+3}]"
def vq(b, n=4): return f"v[{b}:{b+n-1}]"

class Gen:
    def __init__(self, opt):
        self.o = opt
        self.L = []
        self.nlabel = 0
        self.vm = []
        self.nt = " nt" if opt.nt else ""
    def e(self, s): self.L.append("    " + s)
    def lab(self, s): self.L.append(s + ":")
    def c(self, s): self.L.append("    ; " + s)
    def newlabel(self, p="L"):
        self.nlabel += 1
        return f"{p}_{self.nlabel}"
    def vmem(self, s, tag):
        self.e(s); self.vm.append(tag)
    def wait_vm(self, tag, extra=""):
        idx = max(i for i, t in enumerate(self.vm) if t == tag)
        n = len(self.vm) - 1 - idx
        assert n <= 63, (tag, n)
        self.e(f"s_waitcnt vmcnt({n}){extra}")
    def stamp(self, idx):
        if not self.o.stamps: return
        self.e(f"s_memrealtime s[{sE}:{sF}]")
        self.e("s_waitcnt lgkmcnt(0)")
        self.e(f"v_writelane_b32 v{vST}, s{sE}, {idx}")
    def nop(self, n):
        while n > 0:
            k = min(n, 16)
            self.e(f"s_nop {k-1}")
            n -= k
    def allreduce_mod4(self, v, tmp, op="v_add_f32"):
        e = self.e
        self.nop(2)
        e(f"{op} v{v}, v{v}, v{v} row_ror:4")
        self.nop(2)
        e(f"{op} v{v}, v{v}, v{v} row_ror:8")
        self.cross_rows(v, tmp, op)
    def cross_rows(self, v, tmp, op, do32=True):
        e = self.e
        e(f"v_mov_b32 v{tmp}, v{v}")
        self.nop(2)
        e(f"v_permlane16_swap_b32 v{v}, v{tmp}")
        e(f"{op} v{v}, v{v}, v{tmp}")
        if do32:
            e(f"v_mov_b32 v{tmp}, v{v}")
            self.nop(2)
            e(f"v_permlane32_swap_b32 v{v}, v{tmp}")
            e(f"{op} v{v}, v{v}, v{tmp}")
    def cnt_signal(self, k, vtmp):
        e = self.e
        e(f"v_mov_b32 v{vtmp}, 1")
        e("s_mov_b64 exec, 1")
        e(f"ds_add_u32 v{vZ}, v{vtmp} offset:{CNT+4*k}")
        e("s_mov_b64 exec, -1")
    def cnt_wait(self, k, target, vtmp):
        e = self.e
        Lp = self.newlabel("L_cw"); Lo = self.newlabel("L_cwok")
        self.lab(Lp)
        e(f"ds_read_b32 v{vtmp}, v{vZ} offset:{CNT+4*k}")
        e(f"s_add_u32 s{sSPIN}, s{sSPIN}, 1")
        e(f"s_cmp_gt_u32 s{sSPIN}, 0x60000000")
        e(f"s_cbranch_scc1 {Lo}")
        e("s_waitcnt lgkmcnt(0)")
        e(f"v_readfirstlane_b32 s{sG}, v{vtmp}")
        e(f"s_cmp_ge_u32 s{sG}, {target}")
        e(f"s_cbranch_scc0 {Lp}")
        self.lab(Lo)
        e("s_waitcnt lgkmcnt(0)")
    def check_quad(self, q, vacc):
        e = self.e
        for k in range(4):
            e(f"v_xor_b32 v{q+k}, s{sT[k]}, v{q+k}")
        e(f"v_or3_b32 v{vacc}, v{q}, v{q+1}, v{q+2}")
        e(f"v_or_b32 v{vacc}, v{vacc}, v{q+3}")
        e(f"v_and_b32 v{vacc}, 0xfff, v{vacc}")
        e(f"v_cmp_ne_u32 vcc, 0, v{vacc}")
    def gather(self, loads, regs, vacc, tag, bfp=0):
        e, lab = self.e, self.lab
        n = len(loads)
        sP = sG + 1
        Ltop = self.newlabel("L_g"); Ldone = self.newlabel("L_gdone")
        e(f"s_mov_b32 s{sP}, {(1 << n) - 1}")
        self.wait_vm(tag)
        lab(Ltop)
        for k in range(n):
            Ls = self.newlabel("L_gs")
            e(f"s_bitcmp1_b32 s{sP}, {k}")
            e(f"s_cbranch_scc0 {Ls}")
            if k < bfp: self.check_bfp(regs[k], vacc, vacc + 1)
            else: self.check_quad(regs[k], vacc)
            e(f"s_bitset0_b32 s{sP}, {k}")
            e(f"s_cbranch_vccz {Ls}")
            e(f"s_bitset1_b32 s{sP}, {k}")
            for l in loads[k]: e(l)
            lab(Ls)
        e(f"s_cmp_eq_u32 s{sP}, 0")
        e(f"s_cbranch_scc1 {Ldone}")
        e(f"s_add_u32 s{sSPIN}, s{sSPIN}, 0x10000")
        e(f"s_cmp_gt_u32 s{sSPIN}, 0x40000000")
        e(f"s_cbranch_scc1 {Ldone}")
        e("s_waitcnt vmcnt(0)")
        e(f"s_branch {Ltop}")
        lab(Ldone)
    def issue(self, loads, tag):
        for l in loads:
            for x in l[:-1]: self.e(x)
            self.vmem(l[-1], tag)

    def build(self):
        o = self.o
        e, c, lab = self.e, self.c, self.lab
        e("s_cmp_ge_u32 s2, 256")
        e("s_cbranch_scc1 L_end")
        offs = {X: 0, CKV: 8, WQ: 16, WUK: 24, WUV: 32, WO: 40, W1: 56, B1: 64, W2: 72, B2: 80, OUT: 88, DBG: 96, WS: 104}
        sizes = {X: 4096, CKV: 16 << 20, WQ: 4 << 20, WUK: 4 << 20, WUV: 4 << 20, WO: 4 << 20,
                 W1: 512 * 1792 * 2, B1: 1792 * 2, W2: 1792 * 512 * 2, B2: 1024, OUT: 4096, DBG: 256, WS: 1 << 28}
        for b in (X, DBG, WQ, WUK, CKV, WS, WO, W1, W2, B1, WUV, B2, OUT):
            e(f"s_load_dwordx2 s[{b}:{b+1}], s[0:1], {offs[b]}")
        for b in offs:
            e(f"s_mov_b32 s{b+2}, 0x{sizes[b]:x}")
            e(f"s_mov_b32 s{b+3}, 0x00020000")
        e("v_lshrrev_b32 v3, 6, v0")
        e("v_and_b32 v0, 63, v0")
        e(f"v_readfirstlane_b32 s{sWAVE}, v3")
        e(f"v_and_b32 v{vR}, 15, v0")
        e(f"v_lshrrev_b32 v{vG}, 4, v0")
        e(f"s_and_b32 s{sA}, s2, 7")
        e(f"s_lshr_b32 s{sB}, s2, 3")
        e(f"s_lshr_b32 s{sC}, s{sB}, 3")
        e(f"s_lshl_b32 s{sH}, s{sA}, 2")
        e(f"s_add_u32 s{sH}, s{sH}, s{sC}")
        e(f"s_and_b32 s{sJ}, s{sB}, 7")
        e(f"s_lshr_b32 s{sC}, s{sB}, 1")
        e(f"s_lshl_b32 s{sQ}, s{sA}, 4")
        e(f"s_add_u32 s{sQ}, s{sQ}, s{sC}")
        e(f"s_and_b32 s{sHG}, s{sB}, 1")
        e(f"s_lshr_b32 s{sBQ}, s{sQ}, 5")
        e(f"s_and_b32 s{sCHUNK}, s{sQ}, 31")
        e(f"s_mul_i32 s{sF0}, s{sA}, 28")
        e(f"s_add_u32 s{sF0}, s{sF0}, s{sB}")
        e(f"s_lshl_b32 s{sF0}, s{sF0}, 3")
        e(f"s_cmp_lt_u32 s{sB}, 28")
        e(f"s_cselect_b32 s{sF0}, s{sF0}, 1792")
        e(f"s_mov_b32 s{sMASK}, 0xfffff000")
        e(f"s_mov_b32 s{sPLO}, 0x05040100")
        e(f"s_mov_b32 s{sPHI}, 0x07060302")
        e(f"s_mov_b32 s{sCS}, 0x{f32bits(128 ** -0.5 * 1.4426950408889634):08x}")
        e(f"s_mov_b32 s{sSPIN}, 0")
        e(f"s_mov_b32 s{sM0}, 0x3ff")
        e(f"s_mov_b32 s{sM1}, 0xffc00")
        e(f"s_mov_b32 s{sM2}, 0x3ff00000")
        e(f"s_mov_b32 s{sMAG}, 0x4b400000")
        e(f"s_and_b32 s{sU}, s{sWAVE}, 3")
        e(f"v_lshlrev_b32 v{vL16}, 4, v0")
        e(f"v_mov_b32 v{vZ}, 0")
        if o.stamps:
            e(f"v_mov_b32 v{vST}, 0")
        e(f"s_cmp_ge_u32 s{sWAVE}, 4")
        e("s_cbranch_scc1 L_loader")
        self.vm = []
        self.light()
        e("s_branch L_end")
        lab("L_loader")
        self.vm = []
        self.loader()
        lab("L_end")
        e("s_endpgm")

    def layernorm_row(self, XR, U):
        e = self.e
        def allreduce64(v, tmp):
            for rr in (1, 2, 4, 8):
                self.nop(2)
                e(f"v_add_f32 v{v}, v{v}, v{v} row_ror:{rr}")
            self.cross_rows(v, tmp, "v_add_f32")
        for k in range(4):
            e(f"v_lshlrev_b32 v{U+2*k}, 16, v{XR+k}")
            e(f"v_and_b32 v{U+2*k+1}, 0xffff0000, v{XR+k}")
        e(f"v_pk_add_f32 v[4:5], {vq(U,2)}, {vq(U+2,2)}")
        e(f"v_pk_add_f32 v[6:7], {vq(U+4,2)}, {vq(U+6,2)}")
        e("v_pk_add_f32 v[4:5], v[4:5], v[6:7]")
        e("v_add_f32 v4, v4, v5")
        allreduce64(4, 5)
        e(f"v_mul_f32 v4, 0x{f32bits(1/512):08x}, v4")
        for k in range(8):
            e(f"v_sub_f32 v{U+8+k}, v{U+k}, v4")
        e(f"v_mul_f32 v6, v{U+8}, v{U+8}")
        e(f"v_mul_f32 v7, v{U+9}, v{U+9}")
        for k in range(1, 4):
            e(f"v_fmac_f32 v6, v{U+8+2*k}, v{U+8+2*k}")
            e(f"v_fmac_f32 v7, v{U+9+2*k}, v{U+9+2*k}")
        e("v_add_f32 v6, v6, v7")
        allreduce64(6, 5)
        e(f"v_mul_f32 v6, 0x{f32bits(1/512):08x}, v6")
        e("v_cvt_pk_bf16_f32 v4, v4, v6")
        e("v_and_b32 v6, 0xffff0000, v4")
        e("v_lshlrev_b32 v4, 16, v4")
        e(f"v_add_f32 v6, 0x{f32bits(1e-5):08x}, v6")
        e("v_cvt_pk_bf16_f32 v6, v6, v6")
        e("v_lshlrev_b32 v6, 16, v6")
        e("v_sqrt_f32 v6, v6")
        for k in range(8):
            e(f"v_sub_f32 v{U+k}, v{U+k}, v4")
        e("v_cvt_pk_bf16_f32 v6, v6, v6")
        e("v_lshlrev_b32 v6, 16, v6")
        e("v_rcp_f32 v6, v6")
        for k in range(4):
            e(f"v_cvt_pk_bf16_f32 v{XR+k}, v{U+2*k}, v{U+2*k+1}")
        for k in range(4):
            e(f"v_lshlrev_b32 v{U+2*k}, 16, v{XR+k}")
            e(f"v_and_b32 v{U+2*k+1}, 0xffff0000, v{XR+k}")
        for k in range(8):
            e(f"v_mul_f32 v{U+k}, v{U+k}, v6")
        for k in range(4):
            e(f"v_cvt_pk_bf16_f32 v{XR+k}, v{U+2*k}, v{U+2*k+1}")

    def xn_addr(self, v):
        e = self.e
        e(f"v_and_b32 v{v}, 3, v{vR}")
        e(f"v_lshlrev_b32 v{v}, 10, v{v}")
        e(f"v_lshl_add_u32 v{v}, v{vG}, 4, v{v}")
        e(f"s_lshl_b32 s{sA}, s{sU}, 8")
        e(f"v_add_u32 v{v}, s{sA}, v{v}")

    def light(self):
        o = self.o
        e, c, lab = self.e, self.c, self.lab
        nt = self.nt
        XN = ACC
        WQR = WOR
        WQT = PV1
        QACC = PV1 + 16
        WUKF = vM
        vNON = 10
        e(f"v_lshlrev_b32 v5, 16, v{vG}")
        e(f"v_lshl_add_u32 v5, v{vR}, 3, v5")
        e(f"v_lshlrev_b32 v6, 13, v{vR}")
        e(f"v_lshl_add_u32 v6, v{vG}, 4, v6")
        e("s_waitcnt lgkmcnt(0)")
        if o.wsoff:
            e(f"s_add_u32 s{WS}, s{WS}, {o.wsoff << 20}")
            e(f"s_addc_u32 s{WS+1}, s{WS+1}, 0")
            e(f"s_mov_b32 s{WS+2}, {(256 - o.wsoff) << 20}")
        self.stamp(0)
        Lskip = self.newlabel("L_nonce")
        e("s_cmp_ge_u32 s2, 8")
        e(f"s_cbranch_scc1 {Lskip}")
        e(f"s_cmp_lg_u32 s{sWAVE}, 3")
        e(f"s_cbranch_scc1 {Lskip}")
        e(f"s_memrealtime s[{sE}:{sF}]")
        e("v_mov_b32 v18, 0")
        e("v_mov_b32 v19, 0")
        e("s_waitcnt lgkmcnt(0)")
        e(f"s_or_b32 s{sF}, s{sF}, 0x80000000")
        e(f"v_mov_b32 v16, s{sE}")
        e(f"v_mov_b32 v17, s{sF}")
        e("s_mov_b64 exec, 1")
        e(f"buffer_atomic_cmpswap_x2 v[16:19], v{vZ}, {srd(DBG)}, 0 offen sc1")
        e("s_mov_b64 exec, -1")
        lab(Lskip)
        e("s_barrier")
        e(f"s_lshl_b32 s{sB}, s{sH}, 8")
        e(f"s_and_b32 s{sC}, s{sJ}, 1")
        e(f"s_lshl_b32 s{sC}, s{sC}, 7")
        e(f"s_add_u32 s{sB}, s{sB}, s{sC}")
        c("w_uk rows c = 128cq + 32v + 16 tile + r")
        e(f"s_lshr_b32 s{sA}, s{sJ}, 1")
        e(f"s_lshl_b32 s{sA}, s{sA}, 20")
        e(f"s_lshl_b32 s{sC}, s{sWAVE}, 18")
        e(f"s_add_u32 s{sA}, s{sA}, s{sC}")
        e(f"s_add_u32 s{sA}, s{sA}, s{sB}")
        e(f"s_add_u32 s{sC}, s{sA}, {16*8192}")
        for tl in range(2):
            for s in range(2):
                self.vmem(f"buffer_load_dwordx4 {vq(WUKF+(tl*2+s)*4)}, v6, {srd(WUK)}, s{sA if tl == 0 else sC} offen offset:{64*s}{' nt' if o.ntq else ''}", "wuk")
        e(f"s_lshl_b32 s{sD}, s{sWAVE}, 20")
        e(f"s_add_u32 s{sD}, s{sD}, s{sB}")
        e(f"s_lshr_b32 s{sC}, s{sJ}, 1")
        if not o.rot: e(f"s_mov_b32 s{sC}, 0")
        for s in range(4):
            e(f"s_add_u32 s{sA}, s{sC}, {s}")
            e(f"s_and_b32 s{sA}, s{sA}, 3")
            e(f"s_lshl_b32 s{sA}, s{sA}, 18")
            e(f"s_add_u32 s{sA}, s{sA}, s{sD}")
            for jj in range(8):
                self.vmem(f"buffer_load_dwordx2 {vq(WQR+(s*8+jj)*2,2)}, v5, {srd(WQ)}, s{sA} offen{' nt' if o.ntq else ''}", f"wq{s}")
                if jj < 7: e(f"s_add_u32 s{sA}, s{sA}, 8192")
        self.stamp(1)
        if o.gate == 0: self.cnt_signal(6, 3)
        self.xn_addr(4)
        self.cnt_wait(4, 4, 3)
        for s in range(4):
            e(f"s_add_u32 s{sA}, s{sC}, {s}")
            e(f"s_and_b32 s{sA}, s{sA}, 3")
            e(f"s_lshl_b32 s{sA}, s{sA}, 6")
            e(f"v_add_u32 v5, s{sA}, v4")
            e(f"ds_read_b128 {vq(XN+4*s)}, v5 offset:{XNB}")
        c("RED write addr v5 = v*1024 + r*64")
        e(f"s_lshl_b32 s{sA}, s{sWAVE}, 10")
        e(f"v_lshlrev_b32 v5, 6, v{vR}")
        e(f"v_add_u32 v5, s{sA}, v5")
        self.stamp(2)
        for s in range(4):
            self.wait_vm(f"wq{s}", " lgkmcnt(0)" if s == 0 else "")
            if o.gate == s + 1: self.cnt_signal(6, 3)
            for i in range(4):
                for t in range(4):
                    lo = WQR + (s * 8 + 2 * t) * 2 + (i >> 1)
                    hi = WQR + (s * 8 + 2 * t + 1) * 2 + (i >> 1)
                    e(f"v_perm_b32 v{WQT+i*4+t}, v{hi}, v{lo}, s{sPHI if i & 1 else sPLO}")
            self.nop(1)
            for i in range(4):
                cc = "0" if s == 0 else vq(QACC + 4 * i)
                e(f"v_mfma_f32_16x16x32_bf16 {vq(QACC+4*i)}, {vq(XN+4*s)}, {vq(WQT+i*4)}, {cc}")
            if s == 2:
                self.cnt_wait(8, 1, 3)
                e(f"ds_read_b64 v[10:11], v{vZ} offset:{NONCE}")
                e("s_waitcnt lgkmcnt(0)")
                self.decode_tags()
        self.stamp(3)
        e("s_mov_b64 exec, 0xffff")
        self.nop(5)
        for i in range(4):
            e(f"ds_write_b128 v5, {vq(QACC+4*i)} offset:{RED+16*i}")
        e("s_mov_b64 exec, -1")
        self.cnt_signal(0, 3)
        c("stage1: t = 64v+lane: d=t>>2, b=t&3 ; read RED + t*4 + k*1024 ; write QBF + b*128 + d*2")
        e(f"s_lshl_b32 s{sA}, s{sWAVE}, 8")
        e("v_lshlrev_b32 v6, 2, v0")
        e(f"v_add_u32 v6, s{sA}, v6")
        e("v_and_b32 v5, 3, v0")
        e("v_lshlrev_b32 v5, 7, v5")
        e("v_lshrrev_b32 v4, 2, v0")
        e("v_lshl_add_u32 v5, v4, 1, v5")
        e(f"s_lshl_b32 s{sA}, s{sWAVE}, 5")
        e(f"v_add_u32 v5, s{sA}, v5")
        self.cnt_wait(0, 4, 3)
        for k in range(4):
            e(f"ds_read_b32 v{WQT+k}, v6 offset:{RED+1024*k}")
        e("s_waitcnt lgkmcnt(0)")
        e(f"v_add_f32 v{WQT}, v{WQT}, v{WQT+1}")
        e(f"v_add_f32 v{WQT+2}, v{WQT+2}, v{WQT+3}")
        e(f"v_add_f32 v{WQT}, v{WQT}, v{WQT+2}")
        e(f"v_cvt_pk_bf16_f32 v{WQT}, v{WQT}, v{WQT}")
        e(f"ds_write_b16 v5, v{WQT} offset:{QBF}")
        self.cnt_signal(1, 3)
        c("q frag addr v4 = (r&3)*128 + 16g ; publish voff v5 = (r&3)*32768 + 16g")
        e(f"v_and_b32 v6, 3, v{vR}")
        e("v_lshlrev_b32 v4, 7, v6")
        e(f"v_lshl_add_u32 v4, v{vG}, 4, v4")
        e("v_lshlrev_b32 v5, 15, v6")
        e(f"v_lshl_add_u32 v5, v{vG}, 4, v5")
        c("soff = dhalf*131072 + h*1024 + cq*256 + v*64")
        e(f"s_and_b32 s{sA}, s{sJ}, 1")
        e(f"s_lshl_b32 s{sA}, s{sA}, 17")
        e(f"s_lshl_b32 s{sB}, s{sH}, 10")
        e(f"s_add_u32 s{sA}, s{sA}, s{sB}")
        e(f"s_lshr_b32 s{sB}, s{sJ}, 1")
        e(f"s_lshl_b32 s{sB}, s{sB}, 8")
        e(f"s_add_u32 s{sA}, s{sA}, s{sB}")
        e(f"s_lshl_b32 s{sB}, s{sWAVE}, 6")
        e(f"s_add_u32 s{sA}, s{sA}, s{sB}")
        self.cnt_wait(1, 4, 3)
        QF = WQT
        for s in range(2):
            e(f"ds_read_b128 {vq(QF+4*s)}, v4 offset:{QBF+64*s}")
        e("s_waitcnt lgkmcnt(0)")
        for s in range(2):
            for tl in range(2):
                cc = "0" if s == 0 else vq(QACC + 4 * tl)
                e(f"v_mfma_f32_16x16x32_bf16 {vq(QACC+4*tl)}, {vq(WUKF+(tl*2+s)*4)}, {vq(QF+4*s)}, {cc}")
        self.nop(8)
        if o.x2: e(f"s_sleep {o.x2}")
        self.bfp_pack([QACC + k for k in range(8)], QACC + 8, 3, 4)
        e("s_mov_b32 exec_lo, 0x000f000f")
        e("s_mov_b32 exec_hi, 0x000f000f")
        self.vmem(f"buffer_store_dwordx4 {vq(QACC+8)}, v5, {srd(WS)}, s{sA} offen sc1", "pub2")
        e("s_mov_b64 exec, -1")
        self.stamp(4)
        c("H2 base sD = bq*32768 + (16hg+4v)*1024 ; second part +131072 -> sC")
        e(f"s_lshl_b32 s{sD}, s{sBQ}, 15")
        e(f"s_lshl_b32 s{sA}, s{sHG}, 14")
        e(f"s_add_u32 s{sD}, s{sD}, s{sA}")
        e(f"s_lshl_b32 s{sA}, s{sWAVE}, 12")
        e(f"s_add_u32 s{sD}, s{sD}, s{sA}")
        e(f"s_add_u32 s{sC}, s{sD}, 131072")
        def lwo_blk():
            self.wo_rows(4)
            for k in range(8):
                self.vmem(f"buffer_load_dwordx4 {vq(WOR+4*k)}, v{vL16}, {srd(WO)}, s{sDS} offen offset:{1024*(k&3)}", "woe")
                if k == 3: e(f"s_add_u32 s{sDS}, s{sDS}, 4096")
            self.ffn_loads()
        if o.lwo and o.lpos == 2: lwo_blk()
        self.p2_addrs()
        if o.d2: e(f"s_sleep {o.d2}")
        H2R = QKA
        h2loads = []
        for hh in range(4):
            for p in range(2):
                h2loads.append([f"buffer_load_dwordx4 {vq(H2R+(hh*2+p)*4)}, v{vL16}, {srd(WS)}, s{[sD, sC][p]} offen offset:{1024*hh} sc1"])
        self.issue(h2loads, "h2")
        if o.lwo and o.lpos == 1: lwo_blk()
        self.stamp(5)
        self.gather(h2loads, [H2R + 4 * k for k in range(8)], 3, "h2", bfp=8)
        self.stamp(7)
        c("QC write addr v4 = 4v*ROW + (l>>2)*64 + (l&3)*8 ; imm hh*ROW (+32)")
        e(f"s_mul_i32 s{sA}, s{sWAVE}, {4*ROW}")
        e("v_lshrrev_b32 v4, 2, v0")
        e("v_lshlrev_b32 v4, 6, v4")
        e("v_and_b32 v3, 3, v0")
        e("v_lshl_add_u32 v4, v3, 3, v4")
        e(f"v_add_u32 v4, s{sA}, v4")
        FA = H2R + 32; FB = H2R + 40
        for hh in range(4):
            self.bfp_unpack(H2R + hh * 8, FA, 10)
            self.bfp_unpack(H2R + hh * 8 + 4, FB, 11)
            for k in range(8):
                e(f"v_mul_f32 v{FA+k}, v{FA+k}, v10")
            for k in range(8):
                e(f"v_fmac_f32 v{FA+k}, v{FB+k}, v11")
            o4 = H2R + hh * 8
            for k in range(4):
                e(f"v_cvt_pk_bf16_f32 v{o4+k}, v{FA+2*k}, v{FA+2*k+1}")
            e(f"ds_write_b64 v4, {vq(o4,2)} offset:{QC+hh*ROW}")
            e(f"ds_write_b64 v4, {vq(o4+2,2)} offset:{QC+hh*ROW+32}")
        self.cnt_signal(2, 3)
        if o.lwo and o.lpos == 0: lwo_blk()
        self.stamp(6)
        self.cnt_wait(7, 4, 3)
        self.prereads()
        self.cnt_wait(2, 4, 3)
        self.p2(loader=False)
        c("=========== after publish ===========")
        if o.lwo:
            e(f"s_add_u32 s{sSEL}, s{sSEL}, {TILE}")
            e(f"v_add_u32 v3, s{sSEL}, v{vL16}")
            self.wait_vm("woe")
            for k in range(8):
                e(f"ds_write_b128 v3, {vq(WOR+4*k)} offset:{ROW*k}")
        else:
            e("s_barrier")
            self.bulk2()
        h3loads = self.h3_setup(0)
        self.ffn_store()
        self.cnt_signal(9, 3)
        self.tr_addr()
        if o.d3: e(f"s_sleep {o.d3}")
        D3 = PV1 + 16; ST3 = PV1 + 32
        self.issue(h3loads, "h3")
        self.stamp(10)
        self.stamp(11)
        self.gather(h3loads, [D3 + 4 * t for t in range(4)] + [ST3], 3, "h3", bfp=4)
        self.stamp(12)
        self.cnt_wait(9, 8, 3)
        self.wo_tr()
        self.combine(0)
        self.p3_addrs()
        e("s_waitcnt lgkmcnt(0)")
        e("s_barrier")
        self.ffn2()
        e("s_barrier")
        self.p3_tail(loader=False)

    def loader(self):
        o = self.o
        e, c, lab = self.e, self.c, self.lab
        nt = self.nt
        e("v_lshlrev_b32 v3, 2, v0")
        e(f"ds_write_b32 v3, v{vZ} offset:{HBUF}")
        e("s_mov_b64 exec, 0xffff")
        e(f"ds_write_b32 v3, v{vZ} offset:{CNT}")
        e("s_mov_b64 exec, -1")
        e(f"s_mul_i32 s{sDM}, s{sU}, {32*ROW}")
        e(f"s_add_u32 s{sDM}, s{sDM}, {TILE}")
        e(f"s_lshl_b32 s{sDS}, s{sQ}, 17")
        e(f"s_lshl_b32 s{sA}, s{sU}, 15")
        e(f"s_add_u32 s{sDS}, s{sDS}, s{sA}")
        e("s_waitcnt lgkmcnt(0)")
        if o.wsoff:
            e(f"s_add_u32 s{WS}, s{WS}, {o.wsoff << 20}")
            e(f"s_addc_u32 s{WS+1}, s{WS+1}, 0")
            e(f"s_mov_b32 s{WS+2}, {(256 - o.wsoff) << 20}")
        self.stamp(0)
        def dma(n):
            for k in range(n):
                e(f"s_mov_b32 m0, s{sDM}")
                e(f"s_add_u32 s{sDM}, s{sDM}, {ROW}")
                self.vmem(f"buffer_load_dwordx4 v{vL16}, {srd(CKV)}, s{sDS} offen{' nt' if o.ntc else ''} lds", "dma")
                e(f"s_add_u32 s{sDS}, s{sDS}, 1024")
                if o.thr and k >= o.thr - 1 and k < n - 1: e(f"s_waitcnt vmcnt({o.thr-1})")
        XR = PV1; U = PV1 + 8
        e(f"s_lshl_b32 s{sA}, s{sU}, 10")
        self.vmem(f"buffer_load_dwordx4 {vq(XR)}, v{vL16}, {srd(X)}, s{sA} offen", "x")
        e(f"v_add_u32 v3, s{sA}, v{vL16}")
        e("s_barrier")
        if o.pre:
            sv = o.thr; o.thr = 0; dma(o.pre); o.thr = sv
        self.wait_vm("x")
        self.layernorm_row(XR, U)
        e(f"ds_write_b128 v3, {vq(XR)} offset:{XNB}")
        self.cnt_signal(4, 3)
        Ln = self.newlabel("L_noncedone"); Lp = self.newlabel("L_noncepoll"); Lok = self.newlabel("L_nonceok")
        e(f"s_cmp_lg_u32 s{sWAVE}, 7")
        e(f"s_cbranch_scc1 {Ln}")
        if o.dn: e(f"s_sleep {o.dn}")
        e(f"s_load_dwordx2 s[{sE}:{sF}], s[{DBG}:{DBG+1}], 0")
        e("s_waitcnt lgkmcnt(0)")
        e(f"v_mov_b32 v10, s{sE}")
        e(f"v_mov_b32 v11, s{sF}")
        self.nop(1)
        lab(Lp)
        e(f"v_readfirstlane_b32 s{sA}, v11")
        e(f"s_bitcmp1_b32 s{sA}, 31")
        e(f"s_cbranch_scc1 {Lok}")
        e(f"s_add_u32 s{sSPIN}, s{sSPIN}, 0x10000")
        e(f"s_cmp_gt_u32 s{sSPIN}, 0x40000000")
        e(f"s_cbranch_scc1 {Lok}")
        e(f"buffer_load_dwordx2 v[10:11], v{vZ}, {srd(DBG)}, 0 offen sc1")
        e("s_waitcnt vmcnt(0)")
        e(f"s_branch {Lp}")
        lab(Lok)
        e(f"ds_write_b64 v{vZ}, v[10:11] offset:{NONCE}")
        self.cnt_signal(5+3, 3)
        lab(Ln)
        self.p2_addrs()
        if o.gate >= 0: self.cnt_wait(6, 4, 3)
        self.stamp(1)
        def woe(k0, k1, thr):
            for k in range(k0, k1):
                if thr: e(f"s_waitcnt vmcnt({thr-1})")
                self.vmem(f"buffer_load_dwordx4 {vq(WOR+4*k)}, v{vL16}, {srd(WO)}, s{sDS} offen offset:{1024*(k&3)}{' nt' if o.nto else ''}", "woe")
                if k == 3: e(f"s_add_u32 s{sDS}, s{sDS}, 4096")
        WUVR = WOR + 32
        def wuv_blk():
            Lw = self.newlabel("L_nowuv")
            e(f"s_cmp_ge_u32 s{sU}, 2")
            e(f"s_cbranch_scc1 {Lw}")
            e(f"v_lshlrev_b32 v3, 16, v{vG}")
            e(f"v_lshl_add_u32 v3, v{vR}, 2, v3")
            e(f"s_lshr_b32 s{sA}, s{sJ}, 1")
            e(f"s_lshl_b32 s{sA}, s{sA}, 20")
            e(f"s_lshl_b32 s{sB}, s{sH}, 8")
            e(f"s_add_u32 s{sA}, s{sA}, s{sB}")
            e(f"s_and_b32 s{sB}, s{sJ}, 1")
            e(f"s_lshl_b32 s{sB}, s{sB}, 7")
            e(f"s_add_u32 s{sA}, s{sA}, s{sB}")
            e(f"s_lshl_b32 s{sB}, s{sU}, 6")
            e(f"s_add_u32 s{sA}, s{sA}, s{sB}")
            for s in range(4):
                for jj in range(8):
                    e(f"buffer_load_dword v{WUVR+s*8+jj}, v3, {srd(WUV)}, s{sA} offen{nt}")
                    if not (s == 3 and jj == 7):
                        e(f"s_add_u32 s{sA}, s{sA}, {8192 if jj < 7 else 8192*25}")
            lab(Lw)
        if o.lord == 2:
            e(f"s_mov_b32 s{sD}, s{sDS}")
            self.wo_rows(0)
            woe(0, 8, 0)
            self.ffn_loads()
            wuv_blk()
            e(f"s_mov_b32 s{sDS}, s{sD}")
        dma(32 - o.pre)
        self.stamp(2)
        if o.lord != 2: self.wo_rows(0)
        if o.lord != 2: woe(0, o.sig_at + 1, o.thr)
        self.wait_vm("dma"); self.stamp(4); self.cnt_signal(7, 3)
        if o.lord == 0:
            woe(o.sig_at + 1, 8, o.thr)
            self.ffn_loads()
            wuv_blk()
        self.stamp(3)
        self.cnt_wait(7, 4, 3)
        self.prereads()
        self.stamp(5)
        if o.lord == 1:
            woe(o.sig_at + 1, 8, 0)
            self.ffn_loads()
        e(f"ds_read_b64 v[10:11], v{vZ} offset:{NONCE}")
        e("s_waitcnt lgkmcnt(0)")
        self.decode_tags()
        self.cnt_wait(2, 4, 3)
        self.stamp(6)
        self.p2(loader=True)
        if not o.lwo: e("s_barrier")
        if o.lord == 1: wuv_blk()
        vB1 = 11
        e("v_lshrrev_b32 v4, 2, v0")
        e("v_and_b32 v4, 7, v4")
        e("v_lshlrev_b32 v4, 1, v4")
        e(f"s_lshl_b32 s{sC}, s{sF0}, 1")
        self.vmem(f"buffer_load_ushort v{vB1}, v4, {srd(B1)}, s{sC} offen", "wuv")
        if not o.lwo: self.bulk2()
        e(f"s_add_u32 s{sSEL}, s{sSEL}, {TILE}")
        e(f"v_add_u32 v3, s{sSEL}, v{vL16}")
        self.wait_vm("woe")
        for k in range(8):
            e(f"ds_write_b128 v3, {vq(WOR+4*k)} offset:{ROW*k}")
        self.ffn_store()
        self.cnt_signal(9, 3)
        self.tr_addr()
        XF = vM + 0; W1F = WOR + 16; FACC = vM + 16; T = vM + 20
        self.xn_addr(4)
        for s in range(4):
            e(f"ds_read_b128 {vq(XF+4*s)}, v4 offset:{XNB+64*s}")
        c("w1 tr addr v10 = W1L + (128u + 8g + rho)*16 + (kappa&1)*8")
        e(f"v_lshrrev_b32 v254, 2, v{vR}")
        e(f"v_lshl_add_u32 v254, v{vG}, 3, v254")
        e("v_lshlrev_b32 v254, 4, v254")
        e(f"v_and_b32 v4, 1, v{vR}")
        e("v_lshl_add_u32 v254, v4, 3, v254")
        e(f"s_lshl_b32 s{sA}, s{sU}, 11")
        e(f"v_add_u32 v254, s{sA}, v254")
        h3loads = self.h3_setup(1)
        self.stamp(10)
        WUVF = QKA + 32
        self.wait_vm("wuv")
        for s in range(4):
            for i in range(2):
                for t in range(4):
                    e(f"v_perm_b32 v{WUVF+(s*2+i)*4+t}, v{WUVR+s*8+2*t+1}, v{WUVR+s*8+2*t}, s{sPHI if i else sPLO}")
        self.cnt_wait(9, 8, 3)
        self.stamp(11)
        c("FFN1 (loaders)")
        for s in range(4):
            for hf in range(2):
                e(f"ds_read_b64_tr_b16 {vq(W1F+4*s+2*hf,2)}, v254 offset:{W1L+(32*s+4*hf)*16}")
        e(f"s_lshl_b32 s{sA}, s{sU}, 8")
        e(f"v_lshlrev_b32 v4, 4, v{vR}")
        e(f"v_add_u32 v4, s{sA}, v4")
        e("s_waitcnt lgkmcnt(0)")
        for s in range(4):
            cc = "0" if s == 0 else vq(FACC)
            e(f"v_mfma_f32_16x16x32_bf16 {vq(FACC)}, {vq(XF+4*s)}, {vq(W1F+4*s)}, {cc}")
        e("s_mov_b64 exec, 0xffff")
        self.nop(8)
        e(f"ds_write_b128 v4, {vq(FACC)} offset:{RED2}")
        e("s_mov_b64 exec, -1")
        self.cnt_signal(3, 3)
        if o.d3l: e(f"s_sleep {o.d3l}")
        self.issue(h3loads, "h3")
        self.wo_tr()
        Lh = self.newlabel("L_hdone")
        e(f"s_cmp_lg_u32 s{sU}, 0")
        e(f"s_cbranch_scc1 {Lh}")
        self.cnt_wait(3, 4, 3)
        e("v_lshlrev_b32 v4, 2, v0")
        for k in range(4):
            e(f"ds_read_b32 v{T+k}, v4 offset:{RED2+256*k}")
        e("v_and_b32 v5, 3, v0")
        e("v_lshlrev_b32 v5, 6, v5")
        e("v_lshrrev_b32 v4, 2, v0")
        e("v_lshl_add_u32 v5, v4, 1, v5")
        e(f"v_lshlrev_b32 v{vB1}, 16, v{vB1}")
        e("s_waitcnt lgkmcnt(0)")
        e(f"v_add_f32 v{T}, v{T}, v{T+1}")
        e(f"v_add_f32 v{T+2}, v{T+2}, v{T+3}")
        e(f"v_add_f32 v{T}, v{T}, v{T+2}")
        e(f"v_cvt_pk_bf16_f32 v{T}, v{T}, v{T}")
        e(f"v_lshlrev_b32 v{T}, 16, v{T}")
        e(f"v_add_f32 v{T}, v{T}, v{vB1}")
        e(f"v_cvt_pk_bf16_f32 v{T}, v{T}, v{T}")
        e(f"v_lshlrev_b32 v{T}, 16, v{T}")
        e(f"v_max_f32 v{T}, 0, v{T}")
        e(f"v_mul_f32 v{T}, v{T}, v{T}")
        e(f"v_cvt_pk_bf16_f32 v{T}, v{T}, v{T}")
        e(f"s_cmp_lt_u32 s{sF0}, 1792")
        e("s_cselect_b32 exec_lo, -1, 0")
        e("s_mov_b32 exec_hi, 0")
        e(f"ds_write_b16 v5, v{T} offset:{HBUF}")
        e("s_mov_b64 exec, -1")
        self.cnt_signal(5, 3)
        lab(Lh)
        self.cnt_wait(5, 1, 3)
        self.ffn2()
        self.gather(h3loads, [PV1 + 16 + 4 * t for t in range(4)] + [PV1 + 32], 3, "h3", bfp=4)
        self.stamp(12)
        self.combine(1)
        self.p3_addrs()
        e(f"v_and_b32 v4, 3, v{vR}")
        e("v_lshlrev_b32 v3, 8, v4")
        e(f"v_lshl_add_u32 v3, v{vG}, 4, v3")
        e(f"s_lshl_b32 s{sB}, s{sU}, 6")
        e(f"v_add_u32 v4, s{sB}, v7")
        e("s_waitcnt lgkmcnt(0)")
        e("s_barrier")
        Ls1 = self.newlabel("L_nostep1")
        e(f"s_cmp_ge_u32 s{sU}, 2")
        e(f"s_cbranch_scc1 {Ls1}")
        CF = PV1 + 16; CA = PV1 + 32
        for s in range(4):
            e(f"ds_read_b128 {vq(CF+4*s)}, v3 offset:{CTXC+64*s}")
        for s in range(4):
            e(f"s_waitcnt lgkmcnt({3-s})")
            for i in range(2):
                cc = "0" if s == 0 else vq(CA + 4 * i)
                e(f"v_mfma_f32_16x16x32_bf16 {vq(CA+4*i)}, {vq(WUVF+(s*2+i)*4)}, {vq(CF+4*s)}, {cc}")
        self.nop(8)
        for k in range(4):
            e(f"v_cvt_pk_bf16_f32 v{CF+k}, v{CA+k}, v{CA+4+k}")
        e(f"ds_write_b128 v4, {vq(CF)} offset:{CTX}")
        e("s_waitcnt lgkmcnt(0)")
        lab(Ls1)
        e("s_barrier")
        self.p3_tail(loader=True)

    def decode_tags(self):
        e = self.e
        e(f"v_readfirstlane_b32 s{sE}, v10")
        e(f"v_readfirstlane_b32 s{sF}, v11")
        self.nop(1)
        e(f"s_and_b32 s{sT[0]}, s{sE}, 0xfff")
        e(f"s_bfe_u32 s{sT[1]}, s{sE}, 0xc000c")
        e(f"s_lshr_b64 s[{sE}:{sF}], s[{sE}:{sF}], 24")
        e(f"s_and_b32 s{sT[2]}, s{sE}, 0xfff")
        e(f"s_bfe_u32 s{sT[3]}, s{sE}, 0xc000c")
        for k in range(4):
            e(f"v_mov_b32 v{vT[k]}, s{sT[k]}")
        e(f"v_readfirstlane_b32 s{sBT[3]}, v10")
        e(f"s_lshr_b32 s{sE}, s{sE}, 8")
        e(f"s_lshl_b32 s{sBT[0]}, s{sE}, 30")
        e(f"s_lshr_b32 s{sE}, s{sE}, 2")
        e(f"s_lshl_b32 s{sBT[1]}, s{sE}, 30")
        e(f"s_lshr_b32 s{sE}, s{sE}, 2")
        e(f"s_lshl_b32 s{sBT[2]}, s{sE}, 28")
        for k in range(4):
            e(f"v_mov_b32 v{vBT[k]}, s{sBT[k]}")
    def bfp_pack(self, V, D, t0, t1):
        e = self.e
        e(f"v_max3_f32 v{t0}, |v{V[0]}|, |v{V[1]}|, |v{V[2]}|")
        e(f"v_max3_f32 v{t1}, |v{V[3]}|, |v{V[4]}|, |v{V[5]}|")
        e(f"v_max3_f32 v{t0}, |v{V[6]}|, |v{V[7]}|, v{t0}")
        e(f"v_max_f32 v{t0}, v{t0}, v{t1}")
        e(f"v_and_b32 v{t0}, 0x7f800000, v{t0}")
        e(f"v_max_u32 v{t0}, 0x08000000, v{t0}")
        e(f"v_sub_u32 v{t1}, 0x82ff8000, v{t0}")
        for k in range(8):
            e(f"v_fma_f32 v{V[k]}, v{V[k]}, v{t1}, s{sMAG}")
        e(f"v_lshrrev_b32 v{t0}, 3, v{t0}")
        for k in (1, 4, 7): e(f"v_lshlrev_b32 v{V[k]}, 10, v{V[k]}")
        for k in (2, 5): e(f"v_lshlrev_b32 v{V[k]}, 20, v{V[k]}")
        e(f"v_or_b32 v{t0}, v{t0}, v{vBT[2]}")
        e(f"v_bfi_b32 v{V[0]}, s{sM0}, v{V[0]}, v{vBT[0]}")
        e(f"v_bfi_b32 v{V[3]}, s{sM0}, v{V[3]}, v{vBT[1]}")
        e(f"v_bfi_b32 v{V[6]}, s{sM0}, v{V[6]}, v{t0}")
        e(f"v_bfi_b32 v{V[0]}, s{sM1}, v{V[1]}, v{V[0]}")
        e(f"v_bfi_b32 v{V[3]}, s{sM1}, v{V[4]}, v{V[3]}")
        e(f"v_bfi_b32 v{D+2}, s{sM1}, v{V[7]}, v{V[6]}")
        e(f"v_bfi_b32 v{D}, s{sM2}, v{V[2]}, v{V[0]}")
        e(f"v_bfi_b32 v{D+1}, s{sM2}, v{V[5]}, v{V[3]}")
        e(f"v_mov_b32 v{D+3}, v{vBT[3]}")
    def check_bfp(self, q, vacc, t):
        e = self.e
        e(f"v_xor_b32 v{vacc}, s{sBT[0]}, v{q}")
        e(f"v_xor_b32 v{t}, s{sBT[1]}, v{q+1}")
        e(f"v_or_b32 v{vacc}, v{vacc}, v{t}")
        e(f"v_xor_b32 v{t}, s{sBT[2]}, v{q+2}")
        e(f"v_lshrrev_b32 v{vacc}, 30, v{vacc}")
        e(f"v_lshrrev_b32 v{t}, 28, v{t}")
        e(f"v_xor_b32 v{q+3}, s{sBT[3]}, v{q+3}")
        e(f"v_or3_b32 v{vacc}, v{vacc}, v{t}, v{q+3}")
        e(f"v_cmp_ne_u32 vcc, 0, v{vacc}")
    def bfp_unpack(self, q, F, sc):
        e = self.e
        e(f"v_lshlrev_b32 v{sc}, 3, v{q+2}")
        for k in range(8):
            e(f"v_bfe_i32 v{F+k}, v{q+k//3}, {10*(k%3)}, 10")
        e(f"v_and_b32 v{sc}, 0x7f800000, v{sc}")
        for k in range(8):
            e(f"v_cvt_f32_i32 v{F+k}, v{F+k}")
        e(f"v_add_u32 v{sc}, 0xfc004020, v{sc}")
    def p2_addrs(self):
        e = self.e
        self.c("tr base v6 = TILE + (4g+rho)*ROW + 128w + 8kappa ; v7 = v6 + 64*ROW ; QK A addr v5 = TILE + (16w+r)*ROW + 16g")
        e(f"v_lshrrev_b32 v6, 2, v{vR}")
        e(f"v_lshl_add_u32 v6, v{vG}, 2, v6")
        e(f"v_mul_u32_u24 v6, {ROW}, v6")
        e(f"v_and_b32 v7, 3, v{vR}")
        e("v_lshl_add_u32 v6, v7, 3, v6")
        e(f"s_lshl_b32 s{sA}, s{sWAVE}, 7")
        e(f"s_add_u32 s{sA}, s{sA}, {TILE}")
        e(f"v_add_u32 v6, s{sA}, v6")
        e(f"v_add_u32 v7, {64*ROW}, v6")
        e(f"s_lshl_b32 s{sA}, s{sWAVE}, 4")
        e(f"v_add_u32 v5, s{sA}, v{vR}")
        e(f"v_mul_u32_u24 v5, {ROW}, v5")
        e(f"v_lshl_add_u32 v5, v{vG}, 4, v5")
        e(f"v_add_u32 v5, {TILE}, v5")
    def prereads(self):
        e = self.e
        for s in range(16):
            e(f"ds_read_b128 {vq(QKA+4*s)}, v5 offset:{64*s}")
        for t in range(4):
            for i in range(4):
                for hf in range(2):
                    base = 6 if t < 2 else 7
                    off = ((32 * (t & 1)) + 16 * hf) * ROW + 32 * i
                    e(f"ds_read_b64_tr_b16 {vq(PV1+(i*4+t)*4+2*hf,2)}, v{base} offset:{off}")
        e("s_waitcnt lgkmcnt(0)")
    def wo_rows(self, w8_add):
        e = self.e
        e(f"s_and_b32 s{sA}, s{sJ}, 6")
        e(f"s_add_u32 s{sA}, s{sA}, s{sU}")
        if w8_add: e(f"s_add_u32 s{sA}, s{sA}, {w8_add}")
        e(f"s_and_b32 s{sA}, s{sA}, 7")
        e(f"s_lshl_b32 s{sA}, s{sA}, 3")
        e(f"s_mul_i32 s{sSEL}, s{sA}, {ROW}")
        e(f"s_lshl_b32 s{sB}, s{sH}, 7")
        e(f"s_add_u32 s{sA}, s{sA}, s{sB}")
        e(f"s_and_b32 s{sB}, s{sJ}, 1")
        e(f"s_lshl_b32 s{sB}, s{sB}, 6")
        e(f"s_add_u32 s{sA}, s{sA}, s{sB}")
        e(f"s_lshl_b32 s{sDS}, s{sA}, 10")
    def h3_setup(self, blk):
        e = self.e
        self.c("H3 addrs: sD = H3 + (h*8 + (j&6) + blk)*CS3 + u*4096 ; stats v10 = (l&31)*16, sC = ST + (h*4+u)*512")
        e(f"s_lshl_b32 s{sD}, s{sH}, 3")
        e(f"s_and_b32 s{sA}, s{sJ}, 6")
        e(f"s_add_u32 s{sD}, s{sD}, s{sA}")
        if blk: e(f"s_add_u32 s{sD}, s{sD}, {blk}")
        e(f"s_mul_i32 s{sD}, s{sD}, {CS3}")
        e(f"s_lshl_b32 s{sA}, s{sU}, 12")
        e(f"s_add_u32 s{sD}, s{sD}, s{sA}")
        e(f"s_add_u32 s{sD}, s{sD}, {H3_BASE}")
        e("v_and_b32 v10, 31, v0")
        e("v_lshlrev_b32 v10, 4, v10")
        e(f"s_lshl_b32 s{sC}, s{sH}, 2")
        e(f"s_add_u32 s{sC}, s{sC}, s{sU}")
        e(f"s_lshl_b32 s{sC}, s{sC}, 9")
        e(f"s_add_u32 s{sC}, s{sC}, {ST_BASE}")
        D3 = PV1 + 16; ST3 = PV1 + 32
        h3loads = [[f"buffer_load_dwordx4 {vq(D3+4*t)}, v{vL16}, {srd(WS)}, s{sD} offen offset:{1024*t} sc1"] for t in range(4)]
        h3loads.append([f"buffer_load_dwordx4 {vq(ST3)}, v10, {srd(WS)}, s{sC} offen sc1"])
        return h3loads
    def combine(self, blk):
        e, c, lab = self.e, self.c, self.lab
        D3 = PV1 + 16; ST3 = PV1 + 32; SC = PV1 + 36; A0 = PV1 + 40; FU = PV1 + 48
        e(f"v_lshrrev_b32 v{ST3+2}, 20, v{ST3+2}")
        e(f"v_lshrrev_b32 v{ST3+3}, 20, v{ST3+3}")
        e(f"v_or_b32 v{ST3}, v{ST3}, v{ST3+2}")
        e(f"v_or_b32 v{ST3+1}, v{ST3+1}, v{ST3+3}")
        e(f"v_mov_b32 v5, v{ST3}")
        for rr in (1, 2, 4, 8):
            self.nop(2)
            e(f"v_max_f32 v5, v5, v5 row_ror:{rr}")
        self.cross_rows(5, 6, "v_max_f32", do32=False)
        e(f"v_sub_f32 v{ST3}, v{ST3}, v5")
        e(f"v_exp_f32 v{ST3}, v{ST3}")
        c("SCL write v6 = v*128 + (c&7)*16 + (c>>3)*4, c = l&31 ; read v7 = v*128 + (l>>3)*16")
        e("v_and_b32 v6, 7, v0")
        e(f"v_mul_f32 v5, v{ST3}, v{ST3+1}")
        e("v_lshlrev_b32 v6, 4, v6")
        e("v_bfe_u32 v7, v0, 3, 2")
        e("v_add_f32 v5, v5, v5 row_ror:1")
        e("v_lshl_add_u32 v6, v7, 2, v6")
        e(f"s_lshl_b32 s{sA}, s{sWAVE}, 7")
        e("v_add_f32 v5, v5, v5 row_ror:2")
        e(f"v_add_u32 v6, s{sA}, v6")
        e("v_lshrrev_b32 v7, 3, v0")
        e("v_add_f32 v5, v5, v5 row_ror:4")
        e("v_lshlrev_b32 v7, 4, v7")
        e(f"v_add_u32 v7, s{sA}, v7")
        e("v_add_f32 v5, v5, v5 row_ror:8")
        self.cross_rows(5, 4, "v_add_f32", do32=False)
        e("v_rcp_f32 v5, v5")
        self.nop(1)
        e(f"v_mul_f32 v5, v5, v{ST3}")
        e(f"ds_write_b32 v6, v5 offset:{SCL}")
        e(f"ds_read_b128 {vq(SC)}, v7 offset:{SCL}")
        c("CTXC write addr v6 = v*128 + (32*((l>>2)&1) + 4*(l&3) + idx(g))*2")
        e("v_bfe_u32 v6, v0, 2, 1")
        e("v_lshlrev_b32 v6, 6, v6")
        e("v_and_b32 v7, 3, v0")
        e("v_lshl_add_u32 v6, v7, 3, v6")
        e(f"v_and_b32 v7, 1, v{vG}")
        e("v_lshl_add_u32 v6, v7, 2, v6")
        e(f"v_lshrrev_b32 v7, 1, v{vG}")
        e("v_lshl_add_u32 v6, v7, 1, v6")
        e(f"s_lshl_b32 s{sA}, s{sU}, 8")
        e(f"v_add_u32 v6, s{sA}, v6")
        for t in range(4):
            self.bfp_unpack(D3 + 4 * t, FU, 5)
            if t == 0: e("s_waitcnt lgkmcnt(0)")
            e(f"v_mul_f32 v5, v5, v{SC+t}")
            for k in range(8):
                if t == 0: e(f"v_mul_f32 v{A0+k}, v{FU+k}, v5")
                else: e(f"v_fmac_f32 v{A0+k}, v{FU+k}, v5")
        self.nop(1)
        for k in range(4):
            e(f"v_permlane32_swap_b32 v{A0+2*k}, v{A0+2*k+1}")
        for k in range(4):
            e(f"v_add_f32 v{A0+2*k}, v{A0+2*k}, v{A0+2*k+1}")
        self.nop(1)
        e(f"v_permlane16_swap_b32 v{A0}, v{A0+2}")
        e(f"v_permlane16_swap_b32 v{A0+4}, v{A0+6}")
        e(f"v_add_f32 v{A0}, v{A0}, v{A0+2}")
        e(f"v_add_f32 v{A0+4}, v{A0+4}, v{A0+6}")
        self.nop(1)
        e(f"v_add_f32 v{A0}, v{A0}, v{A0} row_ror:8")
        e(f"v_add_f32 v{A0+4}, v{A0+4}, v{A0+4} row_ror:8")
        e(f"v_cvt_pk_bf16_f32 v{A0}, v{A0}, v{A0+4}")
        e(f"ds_write_b16 v6, v{A0} offset:{CTXC+128*blk}")
        e(f"ds_write_b16_d16_hi v6, v{A0} offset:{CTXC+128*blk+32}")
    def tr_addr(self):
        e = self.e
        self.c("tr base (natural k map) v6 = TILE + (8g+rho)*ROW + 128w + 8kappa ; v7 = v6 + 64*ROW ; w2: v5 = W2L + rho*ROW + 128w + 8kappa")
        e(f"v_lshrrev_b32 v5, 2, v{vR}")
        e(f"v_lshl_add_u32 v6, v{vG}, 3, v5")
        e(f"v_mul_u32_u24 v6, {ROW}, v6")
        e(f"v_mul_u32_u24 v5, {ROW}, v5")
        e(f"v_and_b32 v7, 3, v{vR}")
        e("v_lshlrev_b32 v7, 3, v7")
        e(f"s_lshl_b32 s{sA}, s{sWAVE}, 7")
        e(f"v_add_u32 v7, s{sA}, v7")
        e("v_add_u32 v5, v5, v7")
        e("v_add_u32 v6, v6, v7")
        e(f"v_add_u32 v6, {TILE}, v6")
        e(f"v_add_u32 v7, {64*ROW}, v6")
    def wo_dma(self, first, n, tag):
        e = self.e
        for k in range(n):
            e(f"s_mov_b32 m0, s{sDM}")
            e(f"s_add_u32 s{sDM}, s{sDM}, {ROW}")
            self.vmem(f"buffer_load_dwordx4 v{vL16}, {srd(WO)}, s{sDS} offen{' nt' if self.o.nto else ''} lds", tag)
            e(f"s_add_u32 s{sDS}, s{sDS}, 1024")
            if first and self.o.thr2 and k >= self.o.thr2 - 1 and k < n - 1: e(f"s_waitcnt vmcnt({self.o.thr2-1})")
    def wo_setup(self, row0_sreg):
        e = self.e
        e(f"s_mul_i32 s{sDM}, s{row0_sreg}, {ROW}")
        e(f"s_add_u32 s{sDM}, s{sDM}, {TILE}")
        e(f"s_lshl_b32 s{sDS}, s{sH}, 7")
        e(f"s_add_u32 s{sDS}, s{sDS}, s{row0_sreg}")
        e(f"s_lshl_b32 s{sDS}, s{sDS}, 10")
    def ffn_loads(self):
        e = self.e
        self.c("w1 piece: rows 64w + lane, 16 B at col f0 -> ACC[0:3] ; w2 row f0 + w -> ACC[4:7]")
        e("v_mul_u32_u24 v3, 3584, v0")
        e(f"s_mul_i32 s{sA}, s{sWAVE}, {64*3584}")
        e(f"s_lshl_b32 s{sB}, s{sF0}, 1")
        e(f"s_add_u32 s{sA}, s{sA}, s{sB}")
        e(f"s_add_u32 s{sB}, s{sF0}, s{sWAVE}")
        e(f"s_lshl_b32 s{sB}, s{sB}, 10")
        self.vmem(f"buffer_load_dwordx4 {vq(ACC+4)}, v{vL16}, {srd(W2)}, s{sB} offen", "bulk")
        self.vmem(f"buffer_load_dwordx4 {vq(ACC)}, v3, {srd(W1)}, s{sA} offen", "bulk")
    def ffn_store(self):
        e = self.e
        e(f"s_lshl_b32 s{sA}, s{sWAVE}, 10")
        e(f"v_add_u32 v3, s{sA}, v{vL16}")
        e(f"s_mul_i32 s{sA}, s{sWAVE}, {ROW}")
        e(f"v_add_u32 v4, s{sA}, v{vL16}")
        self.wait_vm("bulk")
        e(f"ds_write_b128 v4, {vq(ACC+4)} offset:{W2L}")
        e(f"ds_write_b128 v3, {vq(ACC)} offset:{W1L}")
    def bulk2(self):
        e = self.e
        o = self.o
        e(f"s_lshl_b32 s{sA}, s{sJ}, 4")
        e(f"s_lshl_b32 s{sB}, s{sWAVE}, 3")
        e(f"s_add_u32 s{sA}, s{sA}, s{sB}")
        e(f"s_add_u32 s{sA}, s{sA}, 64")
        e(f"s_and_b32 s{sA}, s{sA}, 127")
        self.wo_setup(sA)
        self.wo_dma(1, 8, "bulk")
    W2F = PV1
    def wo_tr(self):
        e = self.e
        for i in range(4):
            for hf in range(2):
                e(f"ds_read_b64_tr_b16 {vq(self.W2F+4*i+2*hf,2)}, v5 offset:{W2L+4*hf*ROW+32*i}")
        for s in range(2):
            for i in range(4):
                for hf in range(2):
                    off = (32 * s + 4 * hf) * ROW + 32 * i
                    e(f"ds_read_b64_tr_b16 {vq(QKA+(i*2+s)*4+2*hf,2)}, v6 offset:{off}")
    def ffn2(self):
        e = self.e
        HF = vM + 24
        e(f"v_and_b32 v3, 3, v{vR}")
        e("v_lshlrev_b32 v3, 6, v3")
        e(f"v_lshl_add_u32 v3, v{vG}, 4, v3")
        e(f"ds_read_b128 {vq(HF)}, v3 offset:{HBUF}")
        e("s_waitcnt lgkmcnt(0)")
        for i in range(4):
            e(f"v_mfma_f32_16x16x32_bf16 {vq(ACC+4*i)}, {vq(self.W2F+4*i)}, {vq(HF)}, 0")
    def p2(self, loader):
        o = self.o
        e, c, lab = self.e, self.c, self.lab
        S = vM; BW = vM + 4
        c("=========== QK ===========  qc addr v10 = r*ROW + 16g")
        e(f"v_mul_u32_u24 v10, {ROW}, v{vR}")
        e(f"v_lshl_add_u32 v10, v{vG}, 4, v10")
        for s in range(5):
            e(f"ds_read_b128 {vq(BW+4*s)}, v10 offset:{QC+64*s}")
        c("MX write addr v11 = r*32 + w*4 ; read v4 = r*32 ; LS addr v3")
        e(f"v_lshlrev_b32 v4, 5, v{vR}")
        e(f"s_lshl_b32 s{sA}, s{sWAVE}, 2")
        e(f"v_add_u32 v11, s{sA}, v4")
        for s in range(16):
            e(f"s_waitcnt lgkmcnt({min(4, 15-s)})")
            cc = "0" if s == 0 else vq(S)
            e(f"v_mfma_f32_16x16x32_bf16 {vq(S)}, {vq(QKA+4*s)}, {vq(BW+4*(s%5))}, {cc}")
            if s + 5 < 16:
                e(f"ds_read_b128 {vq(BW+4*(s%5))}, v10 offset:{QC+64*(s+5)}")
        c("PBUF write addr v10 = (w>>1)*1024 + lane*16 + (w&1)*8")
        e(f"s_lshr_b32 s{sA}, s{sWAVE}, 1")
        e(f"s_lshl_b32 s{sA}, s{sA}, 10")
        e(f"s_and_b32 s{sB}, s{sWAVE}, 1")
        e(f"s_lshl_b32 s{sB}, s{sB}, 3")
        e(f"s_add_u32 s{sA}, s{sA}, s{sB}")
        e(f"v_add_u32 v10, s{sA}, v{vL16}")
        self.nop(2)
        e(f"v_max3_f32 v5, v{S}, v{S+1}, v{S+2}")
        e(f"v_max_f32 v5, v5, v{S+3}")
        self.cross_rows(5, 3, "v_max_f32")
        e(f"ds_write_b32 v11, v5 offset:{MX}")
        e("s_waitcnt lgkmcnt(0)")
        self.stamp(8)
        e("s_barrier")
        MXR = vM + 8
        e(f"ds_read_b128 {vq(MXR)}, v4 offset:{MX}")
        e(f"ds_read_b128 {vq(MXR+4)}, v4 offset:{MX+16}")
        e("s_waitcnt lgkmcnt(0)")
        e(f"v_max3_f32 v5, v{MXR}, v{MXR+1}, v{MXR+2}")
        e(f"v_max3_f32 v3, v{MXR+3}, v{MXR+4}, v{MXR+5}")
        e(f"v_max3_f32 v5, v5, v{MXR+6}, v{MXR+7}")
        e("v_max_f32 v5, v5, v3")
        e(f"v_mul_f32 v5, s{sCS}, v5")
        for k in range(4):
            e(f"v_fma_f32 v{S+k}, v{S+k}, s{sCS}, -v5")
        for k in range(4):
            e(f"v_exp_f32 v{S+k}, v{S+k}")
        self.nop(1)
        e(f"v_pk_add_f32 {vq(MXR,2)}, {vq(S,2)}, {vq(S+2,2)}")
        e(f"v_cvt_pk_bf16_f32 v{S}, v{S}, v{S+1}")
        e(f"v_cvt_pk_bf16_f32 v{S+1}, v{S+2}, v{S+3}")
        e(f"ds_write_b64 v10, {vq(S,2)} offset:{PBUF}")
        e(f"v_add_f32 v{MXR}, v{MXR}, v{MXR+1}")
        self.cross_rows(MXR, MXR + 1, "v_add_f32")
        e(f"ds_write_b32 v11, v{MXR} offset:{LS}")
        c("H3 publish: voff v4 = (r&7)*HS3 + (r>>3)*64 + 16g ; sA = H3 + hg*16*HS3 + w*CS3 + bq*4096 + chunk*128 ; +8*HS3 -> sC")
        e(f"v_and_b32 v4, 7, v{vR}")
        e(f"v_mul_u32_u24 v4, {HS3}, v4")
        e(f"v_lshl_add_u32 v4, v{vG}, 4, v4")
        e(f"v_lshrrev_b32 v3, 3, v{vR}")
        e("v_lshl_add_u32 v4, v3, 6, v4")
        e("s_mov_b32 vcc_lo, 0xff00ff00")
        e("s_mov_b32 vcc_hi, 0xff00ff00")
        e(f"s_mul_i32 s{sA}, s{sHG}, {16*HS3}")
        e(f"s_mul_i32 s{sB}, s{sWAVE}, {CS3}")
        e(f"s_add_u32 s{sA}, s{sA}, s{sB}")
        e(f"s_lshl_b32 s{sB}, s{sBQ}, 12")
        e(f"s_add_u32 s{sA}, s{sA}, s{sB}")
        e(f"s_lshl_b32 s{sB}, s{sCHUNK}, 7")
        e(f"s_add_u32 s{sA}, s{sA}, s{sB}")
        e(f"s_add_u32 s{sA}, s{sA}, {H3_BASE}")
        e(f"s_add_u32 s{sC}, s{sA}, {8*HS3}")
        e("s_waitcnt lgkmcnt(0)")
        self.stamp(17)
        e("s_barrier")
        self.stamp(18)
        PF = vM; PACC = QKA
        for t in range(4):
            e(f"ds_read_b128 {vq(PF+4*t)}, v{vL16} offset:{PBUF+1024*t}")
        for half in range(2):
            for t in range(4):
                if half == 0: e(f"s_waitcnt lgkmcnt({3-t})")
                for i in range(2 * half, 2 * half + 2):
                    cc = "0" if t == 0 else vq(PACC + 4 * i)
                    e(f"v_mfma_f32_16x16x32_bf16 {vq(PACC+4*i)}, {vq(PV1+(i*4+t)*4)}, {vq(PF+4*t)}, {cc}")
        self.stamp(19)
        if o.x3: e(f"s_sleep {o.x3}")
        GA = QKA + 16; GB = QKA + 20; GX = QKA + 24; GY = QKA + 28
        self.bfp_pack([PACC + k for k in range(8)], GA, 6, 7)
        self.bfp_pack([PACC + 8 + k for k in range(8)], GB, 6, 7)
        c("exchange B_r (lane r<8) <-> A_{r+8} (lane r+8): X = lane<8 ? B : A ; Y = ror8(X) ; S1 = lane<8 ? A : Y ; S2 = lane<8 ? Y : B")
        for k in range(3):
            e(f"v_cndmask_b32 v{GX+k}, v{GB+k}, v{GA+k}, vcc")
        self.nop(1)
        for k in range(3):
            e(f"v_mov_b32 v{GY+k}, v{GX+k} row_ror:8")
        for k in range(3):
            e(f"v_cndmask_b32 v{GA+k}, v{GA+k}, v{GY+k}, vcc")
        self.vmem(f"buffer_store_dwordx4 {vq(GA)}, v4, {srd(WS)}, s{sA} offen sc1", "pub3")
        for k in range(3):
            e(f"v_cndmask_b32 v{GB+k}, v{GY+k}, v{GB+k}, vcc")
        self.vmem(f"buffer_store_dwordx4 {vq(GB)}, v4, {srd(WS)}, s{sC} offen sc1", "pub3")
        if loader:
            Ls = self.newlabel("L_statdone")
            e(f"s_cmp_lg_u32 s{sWAVE}, 7")
            e(f"s_cbranch_scc1 {Ls}")
            ONES = PV1 + 56; LACC = PV1 + 48
            e(f"v_lshlrev_b32 v3, 5, v{vR}")
            e(f"ds_read_b128 {vq(LACC)}, v3 offset:{LS}")
            e(f"ds_read_b128 {vq(LACC+4)}, v3 offset:{LS+16}")
            e("s_waitcnt lgkmcnt(0)")
            e(f"v_pk_add_f32 {vq(LACC,2)}, {vq(LACC,2)}, {vq(LACC+2,2)}")
            e(f"v_pk_add_f32 {vq(LACC+4,2)}, {vq(LACC+4,2)}, {vq(LACC+6,2)}")
            e(f"v_pk_add_f32 {vq(LACC,2)}, {vq(LACC,2)}, {vq(LACC+4,2)}")
            e(f"v_add_f32 v{LACC}, v{LACC}, v{LACC+1}")
            c("addr voff = r*2048 ; soff = ST + hg*16*2048 + bq*512 + chunk*16")
            e(f"v_lshlrev_b32 v3, 11, v{vR}")
            e(f"s_lshl_b32 s{sA}, s{sHG}, 15")
            e(f"s_lshl_b32 s{sB}, s{sBQ}, 9")
            e(f"s_add_u32 s{sA}, s{sA}, s{sB}")
            e(f"s_lshl_b32 s{sB}, s{sCHUNK}, 4")
            e(f"s_add_u32 s{sA}, s{sA}, s{sB}")
            e(f"s_add_u32 s{sA}, s{sA}, {ST_BASE}")
            e(f"v_bfi_b32 v{ONES}, s{sMASK}, v5, v{vT[0]}")
            e(f"v_bfi_b32 v{ONES+1}, s{sMASK}, v{LACC}, v{vT[1]}")
            e(f"v_lshl_or_b32 v{ONES+2}, v5, 20, v{vT[2]}")
            e(f"v_lshl_or_b32 v{ONES+3}, v{LACC}, 20, v{vT[3]}")
            e("s_mov_b64 exec, 0xffff")
            e(f"buffer_store_dwordx4 {vq(ONES)}, v3, {srd(WS)}, s{sA} offen sc1")
            e("s_mov_b64 exec, -1")
            self.nop(2)
            lab(Ls)
        self.stamp(9)
    def p3_addrs(self):
        e = self.e
        self.c("ctx read v7 = (r&3)*256 + 16g ; H5 publish v6 = (r&3)*2048 + (r>>2)*64 + 16g ; sA = H5 + wg*PS5 + w*256")
        e(f"v_and_b32 v6, 3, v{vR}")
        e("v_lshlrev_b32 v7, 7, v6")
        e(f"v_lshl_add_u32 v7, v{vG}, 4, v7")
        e("v_lshlrev_b32 v6, 11, v6")
        e(f"v_lshl_add_u32 v6, v{vG}, 4, v6")
        e(f"v_lshrrev_b32 v5, 2, v{vR}")
        e("v_lshl_add_u32 v6, v5, 6, v6")
        e(f"s_mul_i32 s{sA}, s2, {PS5}")
        e(f"s_lshl_b32 s{sB}, s{sWAVE}, 8")
        e(f"s_add_u32 s{sA}, s{sA}, s{sB}")
        e(f"s_add_u32 s{sA}, s{sA}, {H5_BASE}")
        e(f"v_cmp_eq_u32 s[{sSEL}:{sSEL+1}], 1, v5")
        e(f"v_cmp_eq_u32 s[{sE}:{sF}], 2, v5")
        e(f"v_cmp_eq_u32 s[{sDS}:{sDM}], 3, v5")
    def p3_tail(self, loader):
        o = self.o
        e, c, lab = self.e, self.c, self.lab
        XF = vM
        for s in range(2):
            e(f"ds_read_b128 {vq(XF+4*s)}, v7 offset:{CTX+64*s}")
        for s in range(2):
            e(f"s_waitcnt lgkmcnt({1-s})")
            for i in range(4):
                e(f"v_mfma_f32_16x16x32_bf16 {vq(ACC+4*i)}, {vq(QKA+(i*2+s)*4)}, {vq(XF+4*s)}, {vq(ACC+4*i)}")
        G = vM + 16
        self.nop(6)
        for k in range(4):
            e(f"v_cndmask_b32 v{G+k}, v{ACC+k}, v{ACC+4+k}, s[{sSEL}:{sSEL+1}]")
        for k in range(4):
            e(f"v_cndmask_b32 v{G+k}, v{G+k}, v{ACC+8+k}, s[{sE}:{sF}]")
        for k in range(4):
            e(f"v_cndmask_b32 v{G+k}, v{G+k}, v{ACC+12+k}, s[{sDS}:{sDM}]")
        for i in range(4):
            e(f"v_bfi_b32 v{G+i}, s{sMASK}, v{G+i}, v{vT[i]}")
        self.vmem(f"buffer_store_dwordx4 {vq(G)}, v6, {srd(WS)}, s{sA} offen sc1", "pub5")
        self.stamp(13)
        Lx = self.newlabel("L_exit")
        e("s_cmp_ge_u32 s2, 64")
        e(f"s_cbranch_scc1 {Lx}")
        e("v_lshrrev_b32 v10, 3, v0")
        e(f"v_mul_u32_u24 v10, {PS5}, v10")
        e("v_and_b32 v11, 7, v0")
        e("v_lshl_add_u32 v10, v11, 4, v10")
        e(f"s_mul_i32 s{sB}, s{sWAVE}, {32*PS5}")
        e(f"s_lshl_b32 s{sD}, s2, 7")
        e(f"s_add_u32 s{sB}, s{sB}, s{sD}")
        e(f"s_add_u32 s{sB}, s{sB}, {H5_BASE}")
        bases = [sB, sC, sDS, sDM]
        for t in range(1, 4): e(f"s_add_u32 s{bases[t]}, s{sB}, {t*8*PS5}")
        vXB = WOR
        if not loader:
            e("v_and_b32 v7, 31, v0")
            e("v_lshlrev_b32 v7, 1, v7")
            e(f"s_lshl_b32 s{sA}, s2, 6")
            e(f"s_and_b32 s{sD}, s{sA}, 1023")
            self.vmem(f"buffer_load_ushort v{vXB}, v7, {srd(X)}, s{sA} offen", "xb")
            self.vmem(f"buffer_load_ushort v{vXB+1}, v7, {srd(B2)}, s{sD} offen", "xb")
        if o.d5: e(f"s_sleep {o.d5}")
        G5 = QKA
        loads = [[f"buffer_load_dwordx4 {vq(G5+4*t)}, v10, {srd(WS)}, s{bases[t]} offen sc1"] for t in range(4)]
        self.issue(loads, "h5")
        self.gather(loads, [G5 + 4 * t for t in range(4)], 3, "h5")
        self.stamp(14)
        e(f"v_pk_add_f32 {vq(G5,2)}, {vq(G5,2)}, {vq(G5+4,2)}")
        e(f"v_pk_add_f32 {vq(G5+2,2)}, {vq(G5+2,2)}, {vq(G5+6,2)}")
        e(f"v_pk_add_f32 {vq(G5+8,2)}, {vq(G5+8,2)}, {vq(G5+12,2)}")
        e(f"v_pk_add_f32 {vq(G5+10,2)}, {vq(G5+10,2)}, {vq(G5+14,2)}")
        e(f"v_pk_add_f32 {vq(G5,2)}, {vq(G5,2)}, {vq(G5+8,2)}")
        e(f"v_pk_add_f32 {vq(G5+2,2)}, {vq(G5+2,2)}, {vq(G5+10,2)}")
        e("v_lshlrev_b32 v11, 4, v11")
        e(f"v_and_b32 v4, 1, v{vG}")
        e(f"v_permlane32_swap_b32 v{G5}, v{G5+1}")
        e(f"v_permlane32_swap_b32 v{G5+2}, v{G5+3}")
        e(f"v_add_f32 v{G5}, v{G5}, v{G5+1}")
        e(f"v_add_f32 v{G5+2}, v{G5+2}, v{G5+3}")
        e("v_lshl_add_u32 v11, v4, 3, v11")
        e(f"v_lshrrev_b32 v4, 1, v{vG}")
        e(f"v_permlane16_swap_b32 v{G5}, v{G5+2}")
        e(f"v_add_f32 v{G5}, v{G5}, v{G5+2}")
        e("v_lshl_add_u32 v11, v4, 2, v11")
        e(f"s_lshl_b32 s{sC}, s{sWAVE}, 7")
        e(f"v_add_f32 v{G5}, v{G5}, v{G5} row_ror:8")
        e(f"v_add_u32 v11, s{sC}, v11")
        e(f"ds_write_b32 v11, v{G5} offset:{FIN}")
        e("s_waitcnt lgkmcnt(0)")
        e("s_barrier")
        if not loader:
            Lf = self.newlabel("L_fin")
            e(f"s_cmp_lg_u32 s{sWAVE}, 0")
            e(f"s_cbranch_scc1 {Lf}")
            e("v_lshlrev_b32 v11, 1, v7")
            for k in range(8):
                e(f"ds_read_b32 v{G5+k}, v11 offset:{FIN+128*k}")
            e(f"v_lshlrev_b32 v{vXB}, 16, v{vXB}")
            e(f"v_lshlrev_b32 v{vXB+1}, 16, v{vXB+1}")
            e(f"v_add_f32 v{vXB}, v{vXB}, v{vXB+1}")
            e("s_waitcnt lgkmcnt(0)")
            for k in range(4):
                e(f"v_add_f32 v{G5+k}, v{G5+k}, v{G5+k+4}")
            e(f"v_add_f32 v{G5}, v{G5}, v{G5+2}")
            e(f"v_add_f32 v{G5+1}, v{G5+1}, v{G5+3}")
            e(f"v_add_f32 v{G5}, v{G5}, v{G5+1}")
            e(f"v_add_f32 v{G5}, v{G5}, v{vXB}")
            e(f"v_cvt_pk_bf16_f32 v{G5}, v{G5}, v{G5}")
            e("s_mov_b64 exec, 0xffffffff")
            e(f"buffer_store_short v{G5}, v7, {srd(OUT)}, s{sA} offen")
            e("s_mov_b64 exec, -1")
            lab(Lf)
        lab(Lx)
        if o.stamps:
            e(f"s_memrealtime s[{sE}:{sF}]")
            e("s_waitcnt lgkmcnt(0)")
            Ls = self.newlabel("L_nostamp")
            e(f"s_cmp_lg_u32 s{sU}, {3 if loader else 0}")
            e(f"s_cbranch_scc1 {Ls}")
            e(f"s_and_b32 s{sWAVE}, s{sWAVE}, 4")
            e(f"v_writelane_b32 v{vST}, s{sE}, 15")
            e(f"v_writelane_b32 v{vST}, s{sSPIN}, 16")
            e(f"s_lshl_b32 s{sA}, s2, 8")
            e(f"s_lshl_b32 s{sB}, s{sWAVE}, 5")
            e(f"s_add_u32 s{sA}, s{sA}, s{sB}")
            e(f"s_add_u32 s{sA}, s{sA}, {STAMP_BASE}")
            e("v_lshlrev_b32 v3, 2, v0")
            e("s_mov_b64 exec, 0xffffffff")
            e(f"buffer_store_dword v{vST}, v3, {srd(WS)}, s{sA} offen")
            e("s_mov_b64 exec, -1")
            if o.dbg and not loader:
                c("debug[2+k] = max over WGs of (stamp[2+k] - nonce)")
                e(f"v_subrev_u32 v{vST}, s{sBT[3]}, v{vST}")
                e("v_cmp_gt_u32 vcc, 0x100000, v255")
                e("s_and_b32 exec_lo, vcc_lo, 0xfffc")
                e("s_mov_b32 exec_hi, 0")
                e(f"buffer_atomic_umax v{vST}, v3, {srd(DBG)}, 0 offen")
                e("s_mov_b64 exec, -1")
            lab(Ls)

def generate(opt):
    g = Gen(opt)
    g.build()
    hdr = open(f"cdna_kernels/{NAME}.s.ref").read().split(".amdgcn_target")[0]
    hdr = hdr.replace("grid=(8,1,1) block=(256,1,1) lds=0", f"grid=(256,1,1) block=(512,1,1) lds={LDS_BYTES}")
    s = hdr + f""".amdgcn_target "amdgcn-amd-amdhsa--gfx950"
.text
.globl {NAME}_kernel
.p2align 8
.type {NAME}_kernel,@function
{NAME}_kernel:
""" + "\n".join(g.L) + f"""
.section .rodata,"a"
.p2align 6
.amdhsa_kernel {NAME}_kernel
  .amdhsa_next_free_vgpr 256
  .amdhsa_next_free_sgpr 102
  .amdhsa_accum_offset 256
  .amdhsa_group_segment_fixed_size 0
  .amdhsa_kernarg_size 112
  .amdhsa_user_sgpr_count 2
  .amdhsa_user_sgpr_kernarg_segment_ptr 1
  .amdhsa_system_sgpr_workgroup_id_x 1
.end_amdhsa_kernel
"""
    return s

if __name__ == "__main__":
    opt = Opt()
    out = f"cdna_kernels/{NAME}.s"
    for a in sys.argv[1:]:
        if a == "--stamps": opt.stamps = True
        elif a.startswith("--out="): out = a[6:]
        elif a.startswith("--") and "=" in a:
            k, v = a[2:].split("="); setattr(opt, k, int(v))
    open(out, "w").write(generate(opt))
    print("wrote", out)
```
